```python
import torch

def _softmax(x, axis=-1):
    return torch.softmax(x, dim=axis)
def _gelu(x):
    return torch.nn.functional.gelu(x, approximate="tanh")
def _silu(x):
    return torch.nn.functional.silu(x)
def _sigmoid(x):
    return torch.sigmoid(x)
def _layernorm(x, axis=-1, eps=1e-5):
    m = x.mean(dim=axis, keepdim=True)
    v = x.var(dim=axis, keepdim=True, unbiased=False)
    return (x - m) / torch.sqrt(v + eps)
def _scatter_add(tgt, idx, src, axis=0):
    return tgt.clone().index_add_(axis, idx, src)
def _segment_sum(src, seg, n):
    out = torch.zeros((n,) + src.shape[1:], dtype=src.dtype)
    return out.index_add_(0, seg, src)
def _pad(x, pw):
    flat = tuple(v for pair in reversed(pw) for v in pair)
    return torch.nn.functional.pad(x, flat)

kernel_name = 'recurrent_scan__linear_kernel_hedgehog__glu_gated_swiglu__prompt'

def setup_inputs():

    _w = (lambda a: (lambda t: t.to(torch.bfloat16) if t.is_floating_point() else t)(torch.as_tensor(a)))
    def _A_setup():
        B, S, D, H = 1, 2048, 448, 16
        Dh = D // H
        return {
            "x": _w((lambda *s: torch.randn(*s, dtype=torch.bfloat16) * 0.05)(B, S, D)),
            "wqkv": _w((lambda *s: torch.randn(*s, dtype=torch.bfloat16) * 0.8)(D, 3 * D)),
            "w_phi": _w((lambda *s: torch.randn(*s, dtype=torch.bfloat16) * 0.8)(H, Dh, Dh) * (Dh ** -0.5)),
            "wo": _w((lambda *s: torch.randn(*s, dtype=torch.bfloat16) * 0.8)(D, D)),
        }
    _A_in = _A_setup()

    def _B_setup():
        B, S, D, F = 1, 2048, 448, 1792
        return {
            "x": _w((lambda *s: torch.randn(*s, dtype=torch.bfloat16) * 0.05)(B, S, D)),
            "w1": _w((lambda *s: torch.randn(*s, dtype=torch.bfloat16) * 0.2)(D, F) * (2.0 / D) ** 0.5),
            "w3": _w((lambda *s: torch.randn(*s, dtype=torch.bfloat16) * 0.2)(D, F) * (2.0 / D) ** 0.5),
            "w2": _w((lambda *s: torch.randn(*s, dtype=torch.bfloat16) * 0.2)(F, D) * (2.0 / F) ** 0.5),
        }
    _B_in = _B_setup()

    return {
        "A_x": _A_in["x"],
        "A_wqkv": _A_in["wqkv"],
        "A_w_phi": _A_in["w_phi"],
        "A_wo": _A_in["wo"],
        "B_x": _B_in["x"],
        "B_w1": _B_in["w1"],
        "B_w3": _B_in["w3"],
        "B_w2": _B_in["w2"],
    }

def reference(A_x, A_wqkv, A_w_phi, A_wo, B_x, B_w1, B_w3, B_w2):
    def _A_ref(x, wqkv, w_phi, wo):
        B, S, D = x.shape
        H = 16; Dh = D // H
        qkv = (lambda x, *d: x.permute(*d))((x @ wqkv).reshape(B, S, 3, H, Dh), 2, 0, 3, 1, 4)
        q, k, v = qkv[0], qkv[1], qkv[2]
        pq = torch.einsum("bhsd,hdf->bhsf", q, w_phi)
        pk = torch.einsum("bhsd,hdf->bhsf", k, w_phi)
        phi_q = torch.concatenate([_softmax(pq, axis=-1), _softmax(-pq, axis=-1)], axis=-1)
        phi_k = torch.concatenate([_softmax(pk, axis=-1), _softmax(-pk, axis=-1)], axis=-1)
        kv = torch.einsum("bhsf,bhsd->bhfd", phi_k, v)
        z  = torch.einsum("bhsf->bhf", phi_k)
        num = torch.einsum("bhqf,bhfd->bhqd", phi_q, kv)
        den = torch.einsum("bhqf,bhf->bhq", phi_q, z)[..., None] + 1e-6
        o = num / den
        return (lambda x, *d: x.permute(*d))(o, 0, 2, 1, 3).reshape(B, S, D) @ wo

    def _B_ref(x, w1, w3, w2):
        gate = torch.einsum("bsd,df->bsf", x, w1)
        up = torch.einsum("bsd,df->bsf", x, w3)
        h = _silu(gate) * up
        out = torch.einsum("bsf,fd->bsd", h, w2)
        return out

    x = A_x
    xn = _layernorm(x, axis=-1)
    s = _A_ref(xn, A_wqkv, A_w_phi, A_wo)
    g = _silu(_B_ref(xn, B_w1, B_w3, B_w2))
    return x + s * g
```

```python
import re

TRANS = ("v_exp_f32", "v_log_f32", "v_rcp_f32", "v_rsq_f32", "v_sqrt_f32", "v_sin_f32", "v_cos_f32")


def _regs(tok):
    t = tok.strip()
    t = t.lstrip("-")
    if t.startswith("abs(") and t.endswith(")"):
        t = t[4:-1]
    if t.startswith("|") and t.endswith("|"):
        t = t[1:-1]
    m = re.fullmatch(r"([vas])(\d+)", t)
    if m:
        return {(m.group(1), int(m.group(2)))}
    m = re.fullmatch(r"([vas])\[(\d+):(\d+)\]", t)
    if m:
        return {(m.group(1), i) for i in range(int(m.group(2)), int(m.group(3)) + 1)}
    if t == "vcc":
        return {("s", "vcc")}
    if t == "exec":
        return {("s", "exec")}
    if t == "m0":
        return {("s", "m0")}
    if t == "scc":
        return {("s", "scc")}
    return set()


class Inst:
    __slots__ = ("text", "op", "reads", "writes", "kind", "tag", "meta")

    def __init__(self, text, tag=None, meta=None):
        self.text = text.strip()
        self.tag = tag
        self.meta = meta or {}
        self.parse()

    def __repr__(self):
        return self.text

    def parse(self):
        t = self.text
        self.reads, self.writes = set(), set()
        if not t or t.startswith(";") or t.endswith(":") or t.startswith("."):
            self.op, self.kind = "", "label" if t.endswith(":") else "none"
            return
        if t.startswith("@"):
            self.op, self.kind = t.split()[0], "pseudo"
            return
        code = t.split(";")[0].strip()
        parts = code.split(None, 1)
        op = parts[0]
        self.op = op
        rest = parts[1] if len(parts) > 1 else ""
        ops, cur, depth = [], "", 0
        for ch in rest:
            if ch == "[":
                depth += 1
            if ch == "]":
                depth -= 1
            if ch == "," and depth == 0:
                ops.append(cur.strip())
                cur = ""
            else:
                cur += ch
        if cur.strip():
            ops.append(cur.strip())
        mods = ""
        if ops:
            last = ops[-1].split(None, 1)
            ops[-1] = last[0] if last else ""
            mods = last[1] if len(last) > 1 else ""
        R = [_regs(o) for o in ops]
        allr = set().union(*R) if R else set()
        w, r = set(), set()
        if op.startswith("v_mfma"):
            self.kind = "mfma"
            w = R[0]
            r = R[1] | R[2] | R[3]
            self.meta["srcC"] = R[3]
            self.meta["srcAB"] = R[1] | R[2]
        elif op.startswith("ds_read"):
            self.kind = "ds"
            w = R[0]
            r = R[1]
        elif op.startswith("ds_write"):
            self.kind = "ds"
            r = allr
        elif op.startswith("ds_bpermute") or op.startswith("ds_swizzle"):
            self.kind = "ds"
            w = R[0]
            r = set().union(*R[1:])
        elif op.startswith("buffer_load") or op.startswith("global_load"):
            self.kind = "vmem"
            full = " " + rest + " "
            if " lds " in full or op.startswith("global_load_lds"):
                r = allr | {("s", "m0")}
                self.meta["lds_dma"] = True
            else:
                w = R[0]
                r = set().union(*R[1:])
        elif op.startswith("buffer_store") or op.startswith("global_store"):
            self.kind = "vmem"
            r = allr
            self.meta["store"] = True
            if "x4" in op or "x3" in op:
                self.meta["wide_store_data"] = R[0] if op.startswith("buffer_") else R[1]
        elif op.startswith("buffer_atomic") or op.startswith("global_atomic"):
            self.kind = "vmem"
            r = allr
            self.meta["store"] = True
            if " sc0" in (" " + mods):
                w = R[0]
        elif op.startswith("buffer_wbl2") or op.startswith("buffer_inv"):
            self.kind = "vmem"
        elif op.startswith("s_load") or op.startswith("s_memtime") or op.startswith("s_memrealtime"):
            self.kind = "smem"
            w = R[0]
            r = set().union(*R[1:]) if len(R) > 1 else set()
        elif op in ("s_waitcnt", "s_barrier", "s_nop", "s_sleep", "s_setprio", "s_endpgm"):
            self.kind = "ctl"
        elif op.startswith("s_cbranch") or op == "s_branch":
            self.kind = "branch"
            if "scc" in op:
                r = {("s", "scc")}
            if "vcc" in op:
                r = {("s", "vcc")}
            if "exec" in op:
                r = {("s", "exec")}
        elif op.startswith("s_cmp"):
            self.kind = "salu"
            r = allr
            w = {("s", "scc")}
        elif op.startswith("s_"):
            self.kind = "salu"
            w = set(R[0])
            r = set().union(*R[1:]) if len(R) > 1 else set()
            if op.startswith(("s_add", "s_sub", "s_and", "s_or", "s_xor", "s_lshl", "s_lshr", "s_ashr", "s_bfe", "s_min", "s_max", "s_andn2", "s_not")):
                w |= {("s", "scc")}
            if op.startswith(("s_addc", "s_subb", "s_cselect")):
                r |= {("s", "scc")}
            if "saveexec" in op:
                w |= {("s", "exec")}
                r |= {("s", "exec")}
        elif op.startswith("v_"):
            self.kind = "valu"
            base = op.replace("_e32", "").replace("_e64", "")
            if base.startswith("v_cmp"):
                w = R[0]
                r = set().union(*R[1:])
            elif base.startswith("v_permlane") and "swap" in base:
                w = R[0] | R[1]
                r = R[0] | R[1]
                self.meta["permlane"] = True
            elif base.startswith(("v_readfirstlane", "v_readlane")):
                w = R[0]
                r = set().union(*R[1:])
                self.meta["readlane"] = True
            elif base.startswith(("v_fmac", "v_dot2c", "v_pk_fmac")):
                w = R[0]
                r = allr
            elif base.startswith(("v_add_co", "v_sub_co", "v_addc_co", "v_subb_co")):
                w = R[0] | R[1]
                r = set().union(*R[2:])
            else:
                w = R[0]
                r = set().union(*R[1:]) if len(R) > 1 else set()
                if base.startswith("v_cndmask") and len(R) == 3:
                    r |= {("s", "vcc")}
            if "_dpp" in base:
                self.meta["dpp"] = True
                r |= w
            if base.startswith("v_dot2"):
                self.meta["dot"] = base
                self.meta["dotC"] = R[3] if len(R) > 3 else R[0]
            if base in TRANS:
                self.meta["trans"] = True
            if base.startswith("v_accvgpr"):
                self.meta["accmov"] = True
        else:
            raise ValueError("unknown instruction: " + t)
        self.reads, self.writes = r, w


def I(text, tag=None, **meta):
    return Inst(text, tag, dict(meta))


def is_vreg(r):
    return r[0] in ("v", "a")


def states_of(inst):
    if inst.kind in ("label", "none", "pseudo"):
        return 0
    if inst.op == "s_nop":
        return int(inst.text.split()[1], 0) + 1
    return 1


def resolve_waits(insts, vm_init=None):
    out = []
    vm = []
    lg = []

    def emit_wait(vmn=None, lgn=None):
        s = "s_waitcnt"
        if vmn is not None:
            s += " vmcnt(%d)" % min(vmn, 63)
        if lgn is not None:
            s += " lgkmcnt(%d)" % min(lgn, 15)
        out.append(I(s))

    def need(queue, pred):
        idx = None
        for k, q in enumerate(queue):
            if pred(q):
                idx = k
        if idx is None:
            return None
        return len(queue) - 1 - idx

    for ins in insts:
        if ins.meta.get("raw"):
            out.append(ins)
            continue
        if ins.kind == "pseudo":
            p = ins.text.split()
            if p[0] == "@flushlg":
                lg = []
                continue
            if p[0] == "@waitvm":
                tags = set(p[1:])
                n = need(vm, lambda q: q.tag in tags)
                if n is not None:
                    emit_wait(vmn=n)
                    vm = vm[len(vm) - min(n, 63):] if n > 0 else []
                continue
            if p[0] == "@waitlgkm":
                tags = set(p[1:])
                n = need(lg, lambda q: q.tag in tags)
                if n is not None:
                    emit_wait(lgn=n)
                    lg = lg[len(lg) - min(n, 15):] if n > 0 else []
                continue
            if p[0] == "@waitvm_all":
                if vm:
                    emit_wait(vmn=0)
                    vm = []
                continue
            if p[0] == "@waitlgkm_all":
                if lg:
                    emit_wait(lgn=0)
                    lg = []
                continue
            if p[0] == "@flush":
                vm, lg = [], []
                continue
            if p[0] == "@flushvm":
                vm = []
                continue
            if p[0] == "@assert_empty":
                assert not vm and not lg, "queues not empty at " + ins.text
                continue
            raise ValueError(ins.text)
        if ins.op == "s_waitcnt":
            m = re.search(r"vmcnt\((\d+)\)", ins.text)
            if m:
                n = int(m.group(1))
                vm = vm[len(vm) - n:] if 0 < n < len(vm) else ([] if n == 0 else vm)
            m = re.search(r"lgkmcnt\((\d+)\)", ins.text)
            if m:
                n = int(m.group(1))
                lg = lg[len(lg) - n:] if 0 < n < len(lg) else ([] if n == 0 else lg)
            out.append(ins)
            continue
        touched = ins.reads | ins.writes
        if touched:
            nv = need(vm, lambda q: q.writes & touched)
            smem_pending = any(q.kind == "smem" for q in lg)
            nl = need(lg, lambda q: q.writes & touched)
            if nl is not None and smem_pending:
                nl = 0
            if nv is not None or nl is not None:
                emit_wait(vmn=nv, lgn=nl)
                if nv is not None:
                    k = min(nv, 63)
                    vm = vm[len(vm) - k:] if k > 0 else []
                if nl is not None:
                    k = min(nl, 15)
                    lg = lg[len(lg) - k:] if k > 0 else []
        out.append(ins)
        if ins.kind == "vmem":
            vm.append(ins)
        elif ins.kind in ("ds", "smem"):
            lg.append(ins)
    return out


def pad_hazards(insts, verbose=False):
    out = []
    hist = []
    total = 0
    nnop = 0
    LOOK = 24

    def required(prod, cons):
        req = 0
        pw, pr = prod.writes, prod.reads
        cr, cw = cons.reads, cons.writes
        pk, ck = prod.kind, cons.kind
        vw = {x for x in pw if is_vreg(x)}
        sw = {x for x in pw if x[0] == "s"}
        if pk == "valu":
            if ck == "mfma" and vw & cr:
                req = max(req, 2)
            if ck == "valu" and cons.meta.get("dpp") and vw & cr:
                req = max(req, 2)
            if ck == "valu" and cons.meta.get("permlane") and vw & cr:
                req = max(req, 2)
            if ck == "valu" and cons.meta.get("readlane") and vw & cr:
                req = max(req, 1)
            if prod.meta.get("trans") and ck == "valu" and vw & cr:
                req = max(req, 1)
            if prod.meta.get("dot"):
                if vw & (cr | cw):
                    same = cons.meta.get("dot") == prod.meta.get("dot")
                    onlyC = same and not (vw & (cr - cons.meta.get("dotC", set()))) and (vw & cons.meta.get("dotC", set()))
                    if not onlyC:
                        req = max(req, 3)
            if sw:
                sw2 = sw - {("s", "scc")}
                if ck == "valu" and sw2 & cr:
                    req = max(req, 2)
                if ck == "vmem" and sw2 & cr:
                    req = max(req, 5)
                if ck in ("salu", "branch", "smem") and sw2 & cr:
                    req = max(req, 2)
                if ("s", "exec") in sw:
                    req = max(req, 5)
        if pk == "mfma":
            if ck == "mfma":
                if vw & cons.meta["srcAB"]:
                    req = max(req, 12)
                if vw & cons.meta["srcC"] and cons.meta["srcC"] != vw:
                    req = max(req, 10)
                if vw & cw and not (vw & cons.meta["srcC"]):
                    req = max(req, 12)
            elif vw & (cr | cw):
                req = max(req, 12)
            if ck == "valu" and prod.meta["srcC"] & cw:
                req = max(req, 7)
        if pk == "salu" and ("s", "m0") in pw and cons.meta.get("lds_dma"):
            req = max(req, 1)
        if pk == "vmem" and prod.meta.get("wide_store_data"):
            if prod.meta["wide_store_data"] & cw:
                req = max(req, 2)
        return req

    for ins in insts:
        if ins.kind in ("label", "none"):
            out.append(ins)
            continue
        assert ins.kind != "pseudo", ins.text
        need = 0
        for prod, after in hist:
            req = required(prod, ins)
            if req:
                have = total - after
                if req - have > need:
                    need = req - have
                    if verbose:
                        print("hazard", prod.text, "->", ins.text, req, have)
        while need > 0:
            k = min(need, 16)
            out.append(I("s_nop %d" % (k - 1)))
            total += k
            need -= k
            nnop += 1
        out.append(ins)
        total += states_of(ins)
        hist.append((ins, total))
        if len(hist) > LOOK:
            hist.pop(0)
    return out, nnop


def render(insts):
    lines = []
    for i in insts:
        if i.kind == "label":
            lines.append(i.text)
        else:
            lines.append("    " + i.text)
    return "\n".join(lines)


def interleave(slots, fillers, start=0, end=None):
    end = len(slots) if end is None else end
    n = end - start
    m = len(fillers)
    pos = 0
    for k in range(n):
        tgt = (m * (k + 1) + n - 1) // n if k < n - 1 else m
        tgt = min(tgt, m)
        slots[start + k].extend(fillers[pos:tgt])
        pos = tgt
```

```python
import sys, os
sys.path.insert(0, os.path.dirname(os.path.abspath(__file__)))
from asmlib import I, Inst, resolve_waits, pad_hazards, render

NAME = "recurrent_scan__linear_kernel_hedgehog__glu_gated_swiglu__prompt_kernel"

class Opt:
    stamps = False
    stop_after = None
    spin_max = 1 << 17
    prefetch_code = True
OPT = Opt()

LOG2E = 0x3FB8AA3B
NLOG2E = 0xBFB8AA3B
RS_X, RS_QKV, RS_FF, RS_W2 = 896, 2688, 3584, 896
WS_HB = 0
WS_OB = WS_HB + 16 * 4 * 112 * 1024
WS_KV = WS_OB + 16 * 4 * 32 * 1024
WS_CNT = WS_KV + 16 * 8192
CNT_KV, CNT_H, CNT_O = WS_CNT, WS_CNT + 2048, WS_CNT + 2048 + 4096
WS_TS = WS_CNT + 16384
WS_SIZE = WS_TS + 256 * 4 * 128
SLOT = 16384
NSLOT = 5
L_XST = 81920
XST_W = 16896
XROW = 528
L_PHI = 81920
L_V = L_PHI + 32768
L_WPHI = 149504
L_RSTAT = 163328
L_WO = 0
L_W2ST = 58368
W2STEPS = 10
L_KVF = 140288
L_XT = 148480
L_EX = 58368
L_OUTST = 107520
LDS_SIZE = 163840

S_X, S_QKV, S_PHI, S_WO, S_W1, S_W3, S_W2, S_OUT, S_DBG, S_WS = 4, 8, 12, 16, 20, 24, 28, 32, 36, 40
def srd(b): return "s[%d:%d]" % (b, b + 3)
sW, sM, sGI, sGH, sTY = 44, 45, 46, 47, 48
sT0, sT1, sT2, sT3 = 49, 50, 51, 52
sONES, sE0, sE1 = 53, 54, 55
sLW16, sLW32, sLW8 = 56, 57, 58
sB0, sB1, sB2, sB3, sB4, sB5 = 62, 63, 64, 65, 66, 67
sHB0, sHB1, sHB2 = 68, 69, 70
sSOFF = 71
sKV, sOB, sCNTA, sCNTB = 72, 73, 74, 75
sSPIN = 76
sHI = "s[60:61]"
sTS = 78
sTSB = 77
sP0, sP1_, sP2_, sP3 = 80, 81, 82, 83

vTID, vL = 0, 1
ACC_A, ACC_B = 16, 80
def XR(p, j): return 16 + (j * 4 + p) * 4
vT = 144
vDQ, vDG, vDU, vDG64, vDU64 = 2, 3, 4, 5, 6
vR, vC1, vCS, vMASKF = 7, 8, 9, 10
vL16 = 11
vL4 = 12
vFZ0, vFZ1 = 13, 14
vTA = 192
vXA = 208
vKA = 216
vMISC = 220
A_X = 0
A_WB = 112
A_PHI = 144
A_KVF = 160


def v(i, n=1): return "v%d" % i if n == 1 else "v[%d:%d]" % (i, i + n - 1)
def a(i, n=1): return "a%d" % i if n == 1 else "a[%d:%d]" % (i, i + n - 1)
def s(i, n=1): return "s%d" % i if n == 1 else "s[%d:%d]" % (i, i + n - 1)


class Prog:
    def __init__(self):
        self.ins = []
    def __call__(self, text, tag=None, **meta):
        for line in text.strip().split("\n"):
            line = line.strip()
            if line:
                self.ins.append(I(line, tag, **meta))
        return self
    def ext(self, lst):
        for x in lst:
            if isinstance(x, (list, tuple)):
                self.ext(x)
            else:
                self.ins.append(x)


def L(text, tag=None):
    return [I(x.strip(), tag) for x in text.strip().split("\n") if x.strip()]


def stamp(P, idx):
    if not OPT.stamps:
        return
    P("s_memtime %s" % s(sTS, 2))
    P("s_waitcnt lgkmcnt(0)")
    P("@flushlg")
    P("v_mov_b32 v255, %s" % s(sTS))
    P("s_add_u32 %s, %s, %d" % (s(sP3), s(sTSB), idx * 4))
    P("buffer_store_dword v255, off, %s, %s" % (srd(S_WS), s(sP3)))


uid = [0]
def label(base):
    uid[0] += 1
    return "L_%s_%d" % (base, uid[0])


def spin_until(P, load_text, want, shift_mask=None):
    lab, done = label("spin"), label("spun")
    P("@waitvm_all")
    P("s_mov_b32 %s, %d" % (s(sSPIN), OPT.spin_max))
    P(lab + ":")
    P(load_text)
    P("s_waitcnt vmcnt(0)")
    P("@flushvm")
    P("v_readfirstlane_b32 %s, v254" % s(sT3))
    P("s_nop 1")
    P("s_cmp_eq_u32 %s, %d" % (s(sT3), want))
    P("s_cbranch_scc1 " + done)
    P("s_sub_u32 %s, %s, 1" % (s(sSPIN), s(sSPIN)))
    P("s_cmp_eq_u32 %s, 0" % s(sSPIN))
    P("s_cbranch_scc1 " + done)
    P("s_sleep 1")
    P("s_branch " + lab)
    P(done + ":")


def prologue(P):
    P("s_cmp_ge_u32 s2, 256")
    P("s_cbranch_scc1 L_exit")
    for base, off in ((S_X, 0), (S_QKV, 8), (S_W1, 40), (S_W3, 48), (S_PHI, 16), (S_WO, 24), (S_W2, 56), (S_OUT, 64), (S_DBG, 72), (S_WS, 80)):
        P("s_load_dwordx2 %s, s[0:1], %d" % (s(base, 2), off))
    P("v_and_b32 %s, 63, v0" % v(vL))
    P("v_lshrrev_b32 v15, 6, v0")
    P("s_nop 0")
    P("v_readfirstlane_b32 %s, v15" % s(sW))
    P("s_and_b32 %s, s2, 7" % s(sT0))
    P("s_lshr_b32 %s, s2, 3" % s(sT1))
    P("s_and_b32 %s, %s, 1" % (s(sGH), s(sT0)))
    P("s_lshr_b32 %s, %s, 1" % (s(sT0), s(sT0)))
    P("s_lshl_b32 %s, %s, 2" % (s(sT0), s(sT0)))
    P("s_lshr_b32 %s, %s, 3" % (s(sM), s(sT1)))
    P("s_add_u32 %s, %s, %s" % (s(sM), s(sM), s(sT0)))
    P("s_and_b32 %s, %s, 7" % (s(sGI), s(sT1)))
    P("s_and_b32 %s, %s, 3" % (s(sTY), s(sGI)))
    P("s_lshl_b32 %s, %s, 2" % (s(sT0), s(sGH)))
    P("s_add_u32 %s, %s, %s" % (s(sTY), s(sTY), s(sT0)))
    P("v_lshrrev_b32 v220, 3, %s" % v(vL))
    P("v_and_b32 v221, 7, %s" % v(vL))
    P("v_mul_u32_u24 v222, %d, v220" % RS_X)
    P("v_lshl_add_u32 v222, v221, 4, v222")
    P("s_lshl_b32 %s, %s, 7" % (s(sT0), s(sM)))
    P("s_lshl_b32 %s, %s, 5" % (s(sT1), s(sW)))
    P("s_add_u32 %s, %s, %s" % (s(sT0), s(sT0), s(sT1)))
    P("s_mul_i32 %s, %s, %d" % (s(sT0), s(sT0), RS_X))
    sizes = {S_X: 2048 * 896, S_QKV: 448 * 2688, S_PHI: 16 * 1568, S_WO: 448 * 896, S_W1: 448 * 3584, S_W3: 448 * 3584,
             S_W2: 1792 * 896, S_OUT: 2048 * 896, S_DBG: 256, S_WS: WS_SIZE}
    for b, sz in sizes.items():
        P("s_mov_b32 %s, %d" % (s(b + 2), sz))
        P("s_mov_b32 %s, 0x20000" % s(b + 3))
    P("s_waitcnt lgkmcnt(0)")
    P("@flush")
    for p in range(4):
        P("s_add_u32 %s, %s, %d" % (s(sT1), s(sT0), p * 8 * RS_X))
        for j in range(7):
            P("buffer_load_dwordx4 %s, v222, %s, %s offen offset:%d" % (v(XR(p, j), 4), srd(S_X), s(sT1), j * 128), tag="x%d" % p)
    P("s_mov_b32 %s, 0x3f803f80" % s(sONES))
    P("s_mov_b32 %s, 0x00003f80" % s(sE0))
    P("s_mov_b32 %s, 0x3f800000" % s(sE1))
    P("s_mov_b32 s60, 0")
    P("s_mov_b32 s61, -1")
    P("s_lshl_b32 %s, %s, 11" % (s(sLW16), s(sW)))
    P("s_lshl_b32 %s, %s, 12" % (s(sLW32), s(sW)))
    P("s_lshl_b32 %s, %s, 10" % (s(sLW8), s(sW)))
    P("v_lshlrev_b32 %s, 4, %s" % (v(vL16), v(vL)))
    P("v_lshlrev_b32 %s, 2, %s" % (v(vL4), v(vL)))
    P("v_bfe_u32 v223, v220, 1, 1")
    P("v_lshlrev_b32 v223, 2, v223")
    P("v_xor_b32 v223, v223, v221")
    P("v_lshlrev_b32 v224, 4, v223")
    P("v_mul_u32_u24 v225, %d, v220" % RS_QKV)
    P("v_add_u32 %s, v225, v224" % v(vDQ))
    P("v_mul_u32_u24 v225, %d, v220" % RS_FF)
    P("v_add_u32 %s, v225, v224" % v(vDG))
    P("v_xor_b32 v224, 32, v224")
    P("v_add_u32 %s, v225, v224" % v(vDU))
    P("v_lshrrev_b32 v225, 2, %s" % v(vL))
    P("v_mul_u32_u24 v225, %d, v225" % RS_FF)
    P("v_and_b32 v224, 3, %s" % v(vL))
    P("v_lshlrev_b32 v224, 4, v224")
    P("v_add_u32 %s, v225, v224" % v(vDG64))
    P("v_xor_b32 v224, 32, v224")
    P("v_add_u32 %s, v225, v224" % v(vDU64))
    if OPT.stamps:
        P("s_lshl_b32 %s, s2, 2" % s(sTSB))
        P("s_add_u32 %s, %s, %s" % (s(sTSB), s(sTSB), s(sW)))
        P("s_lshl_b32 %s, %s, 7" % (s(sTSB), s(sTSB)))
        P("s_add_u32 %s, %s, %d" % (s(sTSB), s(sTSB), WS_TS))


def code_prefetch(P):
    if not OPT.prefetch_code:
        return
    P("s_getpc_b64 s[84:85]")
    P("L_pcref_%d:" % uid[0])
    P("s_lshr_b32 %s, s2, 3" % s(sT2))
    P("s_and_b32 %s, %s, 7" % (s(sT2), s(sT2)))
    P("s_lshl_b32 %s, %s, 2" % (s(sT2), s(sT2)))
    P("s_add_u32 %s, %s, %s" % (s(sT2), s(sT2), s(sW)))
    P("s_lshl_b32 %s, %s, 11" % (s(sT2), s(sT2)))
    P("s_sub_u32 s84, s84, L_pcref_%d-%s" % (uid[0], NAME))
    P("s_subb_u32 s85, s85, 0")
    P("v_and_b32 v251, 15, %s" % v(vL))
    P("v_lshlrev_b32 v251, 7, v251")
    P("v_add_u32 v251, %s, v251" % s(sT2))
    P("v_min_u32 v251, L_exit-%s, v251" % NAME)
    P("global_load_dword v252, v251, s[84:85]", tag="pf")
    uid[0] += 1


def dma(srd_base, voff, sbase, soff_const, ldsbase_s, lds_const, tag, extra=""):
    g = []
    g += L("s_add_u32 %s, %s, %d" % (s(sSOFF), s(sbase), soff_const)) if soff_const else L("s_mov_b32 %s, %s" % (s(sSOFF), s(sbase)))
    if ldsbase_s is None:
        g = L("s_mov_b32 m0, %d" % lds_const) + g
    else:
        g = L("s_add_u32 m0, %s, %d" % (s(ldsbase_s), lds_const)) + g
    g += [I("buffer_load_dwordx4 %s, %s, %s offen lds%s" % (v(voff), srd(srd_base), s(sSOFF), extra), tag)]
    return g


class Chunk:
    def __init__(self, kind, row0, nrows, idx):
        self.kind, self.row0, self.nrows, self.idx = kind, row0, nrows, idx
        self.slot = SLOT * (idx % NSLOT)
        self.tag = "c%d" % idx


def chunk_dma(ch):
    k, r0, sl, tag = ch.kind, ch.row0, ch.slot, ch.tag
    out = []
    if k in ("ffA", "ffB"):
        sb = sB2 if k == "ffA" else sB3
        for blk, (sr, vo) in enumerate(((S_W1, vDG), (S_W3, vDU))):
            for i in range(2):
                out.append(dma(sr, vo, sb, (r0 + 8 * i) * RS_FF, sLW16, sl + blk * 8192 + i * 1024, tag))
    elif k in ("q", "k", "v"):
        sec = {"q": 0, "k": 896, "v": 1792}[k]
        if ch.nrows == 128:
            for i in range(4):
                out.append(dma(S_QKV, vDQ, sB4, (r0 + 8 * i) * RS_QKV + sec, sLW32, sl + i * 1024, tag))
        else:
            for i in range(2):
                out.append(dma(S_QKV, vDQ, sB5, (r0 + 8 * i) * RS_QKV + sec, sLW16, sl + i * 1024, tag))
    elif k == "h":
        if ch.nrows == 128:
            for blk, (sr, vo) in enumerate(((S_W1, vDG64), (S_W3, vDU64))):
                for i in range(2):
                    out.append(dma(sr, vo, sB4, (r0 + 16 * i) * RS_FF, sLW16, sl + blk * 8192 + i * 1024, tag))
        else:
            for blk, (sr, vo) in enumerate(((S_W1, vDG64), (S_W3, vDU64))):
                out.append(dma(sr, vo, sB5, r0 * RS_FF, sLW8, sl + blk * 8192, tag))
    return out


def tile_addr_setup(P, kind, base):
    l = v(vL)
    P("v_lshrrev_b32 v220, 5, %s" % l)
    P("v_bfe_u32 v221, %s, 4, 1" % l)
    P("v_bfe_u32 v222, %s, 2, 2" % l)
    P("v_and_b32 v223, 3, %s" % l)
    P("v_bfe_u32 v224, %s, 3, 1" % l)
    P("v_lshl_add_u32 v225, v220, 3, v222")
    n = 0
    if kind == "ff":
        P("v_lshlrev_b32 v226, 7, v225")
        P("v_lshl_add_u32 v226, v221, 13, v226")
        P("v_lshl_add_u32 v226, v223, 3, v226")
        P("v_lshl_or_b32 v227, v224, 1, v221")
        for t in range(4):
            P("v_xor_b32 v228, %d, v227" % t)
            P("v_lshl_add_u32 %s, v228, 5, v226" % v(base + t))
        n = 4
    elif kind == "att":
        P("v_lshlrev_b32 v226, 7, v225")
        P("v_lshlrev_b32 v227, 5, v221")
        P("v_lshl_add_u32 v227, v223, 3, v227")
        P("v_lshlrev_b32 v228, 6, v224")
        for j in range(2):
            P("v_add_u32 v229, %d, v227" % (56 * j))
            P("v_xor_b32 v229, v229, v228")
            P("v_add_u32 %s, v229, v226" % v(base + j))
        n = 2
    elif kind == "h":
        P("v_lshlrev_b32 v226, 6, v225")
        P("v_lshl_add_u32 v226, v221, 13, v226")
        P("v_lshl_add_u32 v226, v223, 3, v226")
        for t in range(2):
            P("v_xor_b32 v228, %d, v221" % t)
            P("v_lshl_add_u32 %s, v228, 5, v226" % v(base + t))
        n = 2
    for t in range(n):
        P("v_add_u32 %s, 0x4000, %s" % (v(base + 4 + t), v(base + t)))


def tile_reads(addr_base, t, ch, srow, rowbytes, buf):
    off = ch.slot + srow * 16 * rowbytes
    reg = addr_base + t
    if ch.slot >= 65536:
        reg, off = addr_base + 4 + t, off - 16384
    assert 0 <= off and off + 4 * rowbytes <= 65535
    return [I("ds_read_b64_tr_b16 %s, %s offset:%d" % (a(buf, 2), v(reg), off)),
            I("ds_read_b64_tr_b16 %s, %s offset:%d" % (a(buf + 2, 2), v(reg), off + 4 * rowbytes))]


class Group:
    def __init__(self, kind, tiles, accs, addr_base):
        self.kind, self.tiles, self.accs, self.addr_base = kind, tiles, accs, addr_base


def build_p1_stream(groups, fillers, bar_pre=None, bar_post=None):
    bar_pre, bar_post = bar_pre or {}, bar_post or {}
    chunks, mf = [], []
    for gi, g in enumerate(groups):
        four = len(g.tiles) == 4
        plan = [(64 * c, 64) for c in range(7)] if four else [(0, 128), (128, 128), (256, 128), (384, 64)]
        rowbytes = 64 if g.kind == "h" else 128
        g.first_chunk = len(chunks)
        for (r0, nr) in plan:
            ch = Chunk(g.kind, r0, nr, len(chunks))
            chunks.append(ch)
            for sr in range(nr // 16):
                for ti, t in enumerate(g.tiles):
                    mf.append(dict(g=gi, ch=ch, srow=sr, t=t, acc=g.accs[ti], ks=(r0 // 16) + sr, rowbytes=rowbytes,
                                   addr=g.addr_base, first_in_chunk=(sr == 0 and ti == 0)))
    N = len(mf)
    LA = 4
    for n, m in enumerate(mf):
        m["buf"] = A_WB + 4 * (n % 8)
    slots = [[] for _ in range(N)]
    pre = []

    def reads(m):
        return tile_reads(m["addr"], m["t"], m["ch"], m["srow"], m["rowbytes"], m["buf"])
    pre += L("@waitvm %s" % chunks[0].tag) + L("s_barrier") + bar_post.get(0, [])
    for n in range(LA):
        pre += reads(mf[n])
    pending_dma = []
    for n, m in enumerate(mf):
        sl = slots[n]
        C = "0" if m["ks"] == 0 else v(m["acc"], 16)
        sl.append(I("v_mfma_f32_32x32x16_bf16 %s, %s, %s, %s" % (v(m["acc"], 16), a(m["buf"], 4), a(A_X + 4 * m["ks"], 4), C)))
        if n + LA < N:
            nx = mf[n + LA]
            if nx["first_in_chunk"]:
                c = nx["ch"].idx
                sl += bar_pre.get(c, []) + L("@waitvm %s" % nx["ch"].tag) + L("s_barrier") + bar_post.get(c, [])
                nc = c + NSLOT - 2
                if c >= 2 and nc < len(chunks):
                    pending_dma += chunk_dma(chunks[nc])
            sl += reads(nx)
        if pending_dma:
            sl += pending_dma.pop(0)
    assert not pending_dma
    for gi, lo, hi, fl in fillers:
        idx = [n for n, m in enumerate(mf) if m["g"] == gi]
        place_fillers(slots, idx[lo:hi], fl)
    body = []
    for sl in slots:
        body += sl
    return chunks, pre, body


def group_chunks(groups):
    chunks = []
    for g in groups:
        plan = [(64 * c, 64) for c in range(7)] if len(g.tiles) == 4 else [(0, 128), (128, 128), (256, 128), (384, 64)]
        for (r0, nr) in plan:
            chunks.append(Chunk(g.kind, r0, nr, len(chunks)))
    return chunks


def place_fillers(slots, idx, fl):
    total = sum(len(g) for g in fl)
    n = len(idx)
    pos, done = 0, 0
    for k, n_ in enumerate(idx):
        tgt = total * (k + 1) / n
        while pos < len(fl) and (done + len(fl[pos]) / 2.0 <= tgt or k == n - 1):
            slots[n_] += fl[pos]
            done += len(fl[pos])
            pos += 1
    assert pos == len(fl)


def G(lst):
    return [[x] for x in lst]


def layernorm(P):
    T = vT
    for p in range(4):
        regs = [XR(p, j) + d for j in range(7) for d in range(4)]
        sA, sB_, qA, qB = T, T + 1, T + 2, T + 3
        for k, x in enumerate(regs):
            sa, qa = (sA, qA) if k % 2 == 0 else (sB_, qB)
            P("v_dot2_f32_bf16 %s, %s, %s, %s" % (v(sa), v(x), s(sONES), "0" if k < 2 else v(sa)))
            P("v_dot2_f32_bf16 %s, %s, %s, %s" % (v(qa), v(x), v(x), "0" if k < 2 else v(qa)))
        P("v_add_f32 %s, %s, %s" % (v(sA), v(sA), v(sB_)))
        P("v_add_f32 %s, %s, %s" % (v(qA), v(qA), v(qB)))
        for ctl in ("quad_perm:[1,0,3,2]", "quad_perm:[2,3,0,1]", "row_half_mirror"):
            P("v_add_f32_dpp %s, %s, %s %s row_mask:0xf bank_mask:0xf" % (v(sA), v(sA), v(sA), ctl))
            P("v_add_f32_dpp %s, %s, %s %s row_mask:0xf bank_mask:0xf" % (v(qA), v(qA), v(qA), ctl))
        inv = 0x3B124925
        P("v_mul_f32 %s, 0x%x, %s" % (v(sA), inv, v(sA)))
        P("v_mul_f32 %s, 0x%x, %s" % (v(qA), inv, v(qA)))
        P("v_fma_f32 %s, -%s, %s, %s" % (v(qA), v(sA), v(sA), v(qA)))
        P("v_cvt_pk_bf16_f32 %s, 0, %s" % (v(sA), v(sA)))
        P("v_max_f32 %s, 0, %s" % (v(qA), v(qA)))
        P("v_sub_f32 %s, 0, %s" % (v(sB_), v(sA)))
        P("v_cvt_pk_bf16_f32 %s, 0, %s" % (v(qA), v(qA)))
        P("v_add_f32 %s, 0x3727c5ac, %s" % (v(qA), v(qA)))
        P("v_cvt_pk_bf16_f32 %s, 0, %s" % (v(qA), v(qA)))
        P("v_sqrt_f32 %s, %s" % (v(qA), v(qA)))
        tt = T + 4
        first = True
        for b0 in range(0, 28, 4):
            batch = regs[b0:b0 + 4]
            for k, x in enumerate(batch):
                P("v_dot2_f32_bf16 %s, %s, %s, %s" % (v(tt + 2 * k), v(x), s(sE0), v(sB_)))
                P("v_dot2_f32_bf16 %s, %s, %s, %s" % (v(tt + 2 * k + 1), v(x), s(sE1), v(sB_)))
            if first:
                P("v_cvt_pk_bf16_f32 %s, 0, %s" % (v(qA), v(qA)))
                first = False
            for k, x in enumerate(batch):
                P("v_cvt_pk_bf16_f32 %s, %s, %s" % (v(x), v(tt + 2 * k), v(tt + 2 * k + 1)))
            j = b0 // 4
            if j == 0:
                P("v_rcp_f32 %s, %s" % (v(qA), v(qA)))
            if j < 4:
                P("ds_write_b128 v230, %s offset:%d" % (v(XR(p, j), 4), p * 8 * XROW + j * 128))
        P("ds_write_b32 v231, %s offset:%d" % (v(qA), p * 32))
    for sx in range(16):
        P("ds_read_b128 %s, v232 offset:%d" % (a(A_X + 4 * sx, 4), sx * 32))
    for p in range(4):
        for j in range(4, 7):
            P("ds_write_b128 v230, %s offset:%d" % (v(XR(p, j), 4), p * 8 * XROW + (j - 4) * 128))
    for sx in range(12):
        P("ds_read_b128 %s, v232 offset:%d" % (a(A_X + 64 + 4 * sx, 4), sx * 32))
    P("ds_read_b32 %s, v233" % v(vR))
    P("v_mul_f32 %s, 0x%x, %s" % (v(vC1), NLOG2E, v(vR)))
    P("v_mul_f32 %s, 0x%x, %s" % (v(vCS), LOG2E, v(vR)))
    P("v_mov_b32 %s, 1.0" % v(vMASKF))
    P("v_cndmask_b32 %s, %s, 0, %s" % (v(vMASKF), v(vMASKF), sHI))


def ln_addr_setup(P):
    l = v(vL)
    P("s_mul_i32 %s, %s, %d" % (s(sT1), s(sW), XST_W))
    P("s_add_u32 %s, %s, %d" % (s(sT1), s(sT1), L_XST))
    P("v_lshrrev_b32 v220, 3, %s" % l)
    P("v_and_b32 v221, 7, %s" % l)
    P("v_mul_u32_u24 v230, %d, v220" % XROW)
    P("v_lshl_add_u32 v230, v221, 4, v230")
    P("v_add_u32 v230, %s, v230" % s(sT1))
    P("s_lshl_b32 %s, %s, 7" % (s(sT2), s(sW)))
    P("s_add_u32 %s, %s, %d" % (s(sT2), s(sT2), L_RSTAT))
    P("v_lshlrev_b32 v231, 2, v220")
    P("v_add_u32 v231, %s, v231" % s(sT2))
    P("v_and_b32 v220, 31, %s" % l)
    P("v_lshrrev_b32 v221, 5, %s" % l)
    P("v_mul_u32_u24 v232, %d, v220" % XROW)
    P("v_lshl_add_u32 v232, v221, 4, v232")
    P("v_add_u32 v232, %s, v232" % s(sT1))
    P("v_lshlrev_b32 v233, 2, v220")
    P("v_add_u32 v233, %s, v233" % s(sT2))


def ffn_epilogue(acc, tmp, sbase, toff):
    Gr = [acc + i for i in range(8)]
    U = [acc + 8 + i for i in range(8)]
    T = [tmp + i for i in range(8)]
    o = []
    o += [I("v_mul_f32 %s, %s, %s" % (v(T[i]), v(vC1), v(Gr[i]))) for i in range(8)]
    o += [I("v_exp_f32 %s, %s" % (v(T[i]), v(T[i]))) for i in range(8)]
    o += [I("v_mul_f32 %s, %s, %s" % (v(Gr[i]), v(Gr[i]), v(U[i]))) for i in range(8)]
    o += [I("v_add_f32 %s, 1.0, %s" % (v(T[i]), v(T[i]))) for i in range(8)]
    o += [I("v_rcp_f32 %s, %s" % (v(T[i]), v(T[i]))) for i in range(8)]
    o += [I("v_mul_f32 %s, %s, %s" % (v(Gr[i]), v(Gr[i]), v(T[i]))) for i in range(8)]
    o += [I("v_cvt_pk_bf16_f32 %s, %s, %s" % (v(U[k]), v(Gr[2 * k]), v(Gr[2 * k + 1]))) for k in range(4)]
    o += [I("buffer_store_dwordx4 %s, %s, %s, %s offen offset:%d sc1" % (v(U[0], 4), v(vL16), srd(S_WS), s(sbase), toff), "hst")]
    return o


def softmax_pm(Pr, TA, tmp):
    mx, mn, t0, t1, sp, sn, sp2, sn2 = [tmp + i for i in range(8)]
    o = []
    A = o.append
    A(I("v_max3_f32 %s, %s, %s, %s" % (v(mx), v(Pr[0]), v(Pr[1]), v(Pr[2]))))
    A(I("v_min3_f32 %s, %s, %s, %s" % (v(mn), v(Pr[0]), v(Pr[1]), v(Pr[2]))))
    for k in range(3, 15, 2):
        A(I("v_max3_f32 %s, %s, %s, %s" % (v(mx), v(mx), v(Pr[k]), v(Pr[k + 1]))))
        A(I("v_min3_f32 %s, %s, %s, %s" % (v(mn), v(mn), v(Pr[k]), v(Pr[k + 1]))))
    A(I("v_max_f32 %s, %s, %s" % (v(mx), v(mx), v(Pr[15]))))
    A(I("v_min_f32 %s, %s, %s" % (v(mn), v(mn), v(Pr[15]))))
    A(I("v_mov_b32 %s, %s" % (v(t0), v(mx))))
    A(I("v_mov_b32 %s, %s" % (v(t1), v(mn))))
    A(I("s_nop 0"))
    A(I("v_permlane32_swap_b32 %s, %s" % (v(mx), v(t0))))
    A(I("v_permlane32_swap_b32 %s, %s" % (v(mn), v(t1))))
    A(I("v_max_f32 %s, %s, %s" % (v(mx), v(mx), v(t0))))
    A(I("v_min_f32 %s, %s, %s" % (v(mn), v(mn), v(t1))))
    A(I("v_mul_f32 %s, %s, %s" % (v(mx), v(mx), v(vCS))))
    A(I("v_mul_f32 %s, %s, %s" % (v(mn), v(mn), v(vCS))))
    for i in range(16):
        A(I("v_fma_f32 %s, %s, %s, -%s" % (v(TA[i]), v(Pr[i]), v(vCS), v(mx))))
        A(I("v_fma_f32 %s, %s, %s, %s" % (v(Pr[i]), v(Pr[i]), v(vC1), v(mn))))
    for i in range(16):
        A(I("v_exp_f32 %s, %s" % (v(TA[i]), v(TA[i]))))
        A(I("v_exp_f32 %s, %s" % (v(Pr[i]), v(Pr[i]))))
    A(I("v_add_f32 %s, %s, %s" % (v(sp), v(TA[0]), v(TA[1]))))
    A(I("v_add_f32 %s, %s, %s" % (v(sn), v(Pr[0]), v(Pr[1]))))
    A(I("v_add_f32 %s, %s, %s" % (v(sp2), v(TA[12]), v(TA[13]))))
    A(I("v_add_f32 %s, %s, %s" % (v(sn2), v(Pr[12]), v(Pr[13]))))
    for i in range(2, 12):
        A(I("v_add_f32 %s, %s, %s" % (v(sp), v(sp), v(TA[i]))))
        A(I("v_add_f32 %s, %s, %s" % (v(sn), v(sn), v(Pr[i]))))
        if i < 4:
            A(I("v_add_f32 %s, %s, %s" % (v(sp2), v(sp2), v(TA[12 + i]))))
            A(I("v_add_f32 %s, %s, %s" % (v(sn2), v(sn2), v(Pr[12 + i]))))
    A(I("v_fma_f32 %s, %s, %s, %s" % (v(sp), v(sp2), v(vMASKF), v(sp))))
    A(I("v_fma_f32 %s, %s, %s, %s" % (v(sn), v(sn2), v(vMASKF), v(sn))))
    A(I("v_mov_b32 %s, %s" % (v(t0), v(sp))))
    A(I("v_mov_b32 %s, %s" % (v(t1), v(sn))))
    A(I("s_nop 0"))
    A(I("v_permlane32_swap_b32 %s, %s" % (v(sp), v(t0))))
    A(I("v_permlane32_swap_b32 %s, %s" % (v(sn), v(t1))))
    A(I("v_add_f32 %s, %s, %s" % (v(sp), v(sp), v(t0))))
    A(I("v_add_f32 %s, %s, %s" % (v(sn), v(sn), v(t1))))
    A(I("v_rcp_f32 %s, %s" % (v(sp), v(sp))))
    A(I("v_rcp_f32 %s, %s" % (v(sn), v(sn))))
    A(I("s_nop 0"))
    A(I("v_mul_f32 %s, %s, %s" % (v(sp2), v(sp), v(vMASKF))))
    A(I("v_mul_f32 %s, %s, %s" % (v(sn2), v(sn), v(vMASKF))))
    for i in range(16):
        A(I("v_mul_f32 %s, %s, %s" % (v(TA[i]), v(TA[i]), v(sp if i < 12 else sp2))))
        A(I("v_mul_f32 %s, %s, %s" % (v(Pr[i]), v(Pr[i]), v(sn if i < 12 else sn2))))
    for k in range(8):
        A(I("v_cvt_pk_bf16_f32 %s, %s, %s" % (v(TA[k]), v(TA[2 * k]), v(TA[2 * k + 1]))))
        A(I("v_cvt_pk_bf16_f32 %s, %s, %s" % (v(Pr[k]), v(Pr[2 * k]), v(Pr[2 * k + 1]))))
    return o


def feature_logits(acc, pk, dst, head):
    o = []
    for k in range(8):
        o.append(I("v_cvt_pk_bf16_f32 %s, %s, %s" % (v(pk + k), v(acc + 2 * k), v(acc + 2 * k + 1))))
    for k in (6, 7):
        o.append(I("v_cndmask_b32 %s, %s, 0, %s" % (v(pk + k), v(pk + k), sHI)))
    o.append(I("v_mfma_f32_32x32x16_bf16 %s, %s, %s, 0" % (v(dst, 16), a(A_PHI + 8 * head, 4), v(pk, 4))))
    o.append(I("v_mfma_f32_32x32x16_bf16 %s, %s, %s, %s" % (v(dst, 16), a(A_PHI + 8 * head + 4, 4), v(pk + 4, 4), v(dst, 16))))
    return o


def exch_addr_setup():
    o = []
    l = v(vL)
    A = lambda t: o.append(I(t))
    A("v_and_b32 v220, 1, %s" % l)
    A("v_bfe_u32 v221, %s, 2, 2" % l)
    A("v_lshl_or_b32 v220, v221, 1, v220")
    A("v_bfe_u32 v221, %s, 1, 1" % l)
    A("v_lshl_or_b32 v220, v221, 3, v220")
    A("v_lshrrev_b32 v221, 5, %s" % l)
    A("v_xor_b32 v220, v220, v221")
    A("v_lshlrev_b32 v220, 3, v220")
    A("v_and_b32 v221, 31, %s" % l)
    A("v_lshl_add_u32 v220, v221, 7, v220")
    A("s_lshl_b32 %s, %s, 12" % (s(sP0), s(sW)))
    A("s_add_u32 %s, %s, %d" % (s(sP0), s(sP0), L_PHI))
    A("v_add_u32 v220, %s, v220" % s(sP0))
    for c in range(8):
        A("v_xor_b32 %s, %d, v220" % (v(vXA + c), 16 * c))
    A("v_bfe_u32 v220, %s, 2, 1" % l)
    A("v_bfe_u32 v221, %s, 3, 1" % l)
    A("v_lshl_or_b32 v220, v221, 3, v220")
    A("v_lshrrev_b32 v221, 5, %s" % l)
    A("v_lshl_or_b32 v220, v221, 2, v220")
    A("v_bfe_u32 v222, %s, 4, 1" % l)
    A("v_and_b32 v223, 3, %s" % l)
    A("v_lshl_or_b32 v222, v222, 2, v223")
    A("v_bfe_u32 v223, %s, 2, 2" % l)
    A("v_lshl_or_b32 v223, v221, 3, v223")
    A("v_lshlrev_b32 v223, 7, v223")
    A("s_and_b32 %s, %s, 1" % (s(sP0), s(sW)))
    A("s_lshl_b32 %s, %s, 3" % (s(sP0), s(sP0)))
    A("s_lshr_b32 %s, %s, 1" % (s(sP1_), s(sW)))
    A("s_lshl_b32 %s, %s, 3" % (s(sP2_), s(sP1_)))
    A("s_lshl_b32 %s, %s, 14" % (s(sP1_), s(sP1_)))
    A("s_add_u32 %s, %s, %d" % (s(sP1_), s(sP1_), L_PHI))
    for q in range(2):
        A("v_xor_b32 v224, %d, v220" % (2 * q))
        A("v_or_b32 v225, %s, v222" % s(sP0))
        A("v_xor_b32 v225, v225, v224")
        A("v_lshl_add_u32 v225, v225, 3, v223")
        A("v_add_u32 v225, %d, v225" % (512 * q))
        A("v_add_u32 %s, %s, v225" % (v(vKA + q), s(sP1_)))
        A("v_or_b32 v225, %s, v222" % s(sP2_))
        A("v_xor_b32 v225, v225, v224")
        A("v_lshl_add_u32 v225, v225, 3, v223")
        A("v_add_u32 %s, %d, v225" % (v(vKA + 2 + q), L_V + 512 * q))
    return o


def wphi_frags():
    o = []
    l = v(vL)
    A = lambda t: o.append(I(t))
    A("v_bfe_u32 v220, %s, 4, 1" % l)
    A("v_and_b32 v221, 3, %s" % l)
    A("v_lshl_or_b32 v220, v220, 2, v221")
    A("v_cmp_eq_u32 vcc, 7, v220")
    A("v_lshlrev_b32 v220, 3, v220")
    A("v_cndmask_b32 v220, v220, 0, vcc")
    A("v_lshrrev_b32 v221, 5, %s" % l)
    A("v_bfe_u32 v222, %s, 2, 2" % l)
    A("v_lshl_or_b32 v221, v221, 2, v222")
    A("v_mul_u32_u24 v221, 56, v221")
    A("v_add_u32 v220, v220, v221")
    A("v_add_u32 v220, %d, v220" % L_WPHI)
    for j in range(2):
        for sx in range(2):
            for q in range(2):
                off = j * 1568 + (16 * sx + 8 * q) * 56
                A("ds_read_b64_tr_b16 %s, v220 offset:%d" % (a(A_PHI + 8 * j + 4 * sx + 2 * q, 2), off))
    return o


def v_epilogue(accV):
    o = []
    for j in range(2):
        acc = accV[j]
        o += [I("v_mul_f32 %s, %s, %s" % (v(acc + i), v(acc + i), v(vR))) for i in range(16)]
        o += [I("v_cvt_pk_bf16_f32 %s, %s, %s" % (v(acc + k), v(acc + 2 * k), v(acc + 2 * k + 1))) for k in range(8)]
        o.append(I("v_mov_b32 v236, 0x3f80"))
        o.append(I("v_cndmask_b32 %s, %s, v236, %s" % (v(acc + 6), v(acc + 6), sHI)))
        o.append(I("v_cndmask_b32 %s, %s, 0, %s" % (v(acc + 7), v(acc + 7), sHI)))
        for rq in range(4):
            o.append(I("ds_write_b64 %s, %s offset:%d" % (v(vXA + 4 * j + rq), v(acc + 2 * rq, 2), L_V - L_PHI), "phiw"))
    return o


def k_epilogue(accK, dsts):
    o = []
    for j in range(2):
        pk = vT + 32 + 8 * j
        o += feature_logits(accK[j], pk, dsts[j], j)
    for j in range(2):
        Pr = [dsts[j] + i for i in range(16)]
        TA = [vT + i for i in range(16)]
        o += softmax_pm(Pr, TA, vT + 16)
        for rq in range(4):
            o.append(I("ds_write_b64 %s, %s offset:%d" % (v(vXA + rq), v(TA[2 * rq], 2), j * 16384), "phiw"))
            o.append(I("ds_write_b64 %s, %s offset:%d" % (v(vXA + 4 + rq), v(Pr[2 * rq], 2), j * 16384), "phiw"))
    return o


def kv_tile(dst):
    o = []
    bufA, bufB = A_KVF, A_KVF + 16
    for ks in range(8):
        ba, bb = bufA + 4 * (ks % 4), bufB + 4 * (ks % 4)
        for q in range(2):
            o.append(I("ds_read_b64_tr_b16 %s, %s offset:%d" % (a(ba + 2 * q, 2), v(vKA + q), ks * 2048)))
            o.append(I("ds_read_b64_tr_b16 %s, %s offset:%d" % (a(bb + 2 * q, 2), v(vKA + 2 + q), ks * 2048)))
        if ks >= 2:
            k2 = ks - 2
            o.append(I("v_mfma_f32_32x32x16_bf16 %s, %s, %s, %s" % (v(dst, 16), a(bufA + 4 * (k2 % 4), 4), a(bufB + 4 * (k2 % 4), 4), "0" if k2 == 0 else v(dst, 16))))
    for k2 in (6, 7):
        o.append(I("v_mfma_f32_32x32x16_bf16 %s, %s, %s, %s" % (v(dst, 16), a(bufA + 4 * (k2 % 4), 4), a(bufB + 4 * (k2 % 4), 4), v(dst, 16))))
    return o


def kv_atomics(src):
    return [I("buffer_atomic_add_f32 %s, %s, %s, %s offen offset:%d" % (v(src + r), v(vL4), srd(S_WS), s(sKV), r * 256), "kvat") for r in range(16)]


def raw(lst):
    for x in lst:
        x.meta["raw"] = True
    return lst


def check_flag(vreg, dbg_off_s):
    ok, lab = label("zok"), label("zspin")
    o = L("v_readfirstlane_b32 %s, %s" % (s(sT3), v(vreg)))
    o += L("s_nop 1")
    o += L("s_cmp_eq_u32 %s, 1" % s(sT3))
    o += L("s_cbranch_scc1 " + ok)
    o += raw(L("""s_mov_b32 %s, %d
%s:
buffer_load_dword %s, off, %s, %s sc1
s_waitcnt vmcnt(0)
v_readfirstlane_b32 %s, %s
s_nop 1
s_cmp_eq_u32 %s, 1
s_cbranch_scc1 %s
s_sub_u32 %s, %s, 1
s_cmp_eq_u32 %s, 0
s_cbranch_scc1 %s
s_sleep 1
s_branch %s""" % (s(sSPIN), OPT.spin_max, lab, v(vreg), srd(S_DBG), s(dbg_off_s), s(sT3), v(vreg), s(sT3), ok,
                  s(sSPIN), s(sSPIN), s(sSPIN), ok, lab)))
    o += L(ok + ":")
    return o


def only_wave0(insts):
    skip = label("nw0")
    return L("s_cmp_lg_u32 %s, 0" % s(sW)) + L("s_cbranch_scc1 " + skip) + raw(insts) + L(skip + ":")


def signal(counter_s):
    return only_wave0(L("v_mov_b32 v253, 1") + L("s_mov_b64 exec, 1") +
                      L("buffer_atomic_add v253, off, %s, %s sc1" % (srd(S_WS), s(counter_s))) + L("s_mov_b64 exec, -1"))


def zero_init(P, is_A):
    skip = label("nz")
    if is_A:
        P("s_lshl_b32 %s, %s, 1" % (s(sT1), s(sTY)))
        P("s_cmp_lg_u32 %s, %s" % (s(sT1), s(sM)))
        P("s_cbranch_scc1 " + skip)
        blk = L("v_mov_b32 v240, 0\nv_mov_b32 v241, 0\nv_mov_b32 v242, 0\nv_mov_b32 v243, 0")
        blk += L("s_lshl_b32 %s, %s, 14" % (s(sT1), s(sTY)))
        blk += L("s_add_u32 %s, %s, %s" % (s(sT1), s(sT1), s(sLW32)))
        blk += L("s_add_u32 %s, %s, %d" % (s(sT1), s(sT1), WS_KV))
        for i in range(4):
            blk += L("buffer_store_dwordx4 v[240:243], %s, %s, %s offen offset:%d sc1" % (v(vL16), srd(S_WS), s(sT1), i * 1024))
        blk += L("buffer_store_dword v240, off, %s, %s sc1" % (srd(S_WS), s(sCNTA)))
        P.ext(raw(blk))
    else:
        P("s_cmp_lg_u32 %s, 0" % s(sTY))
        P("s_cbranch_scc1 " + skip)
        blk = L("v_mov_b32 v240, 0")
        blk += L("buffer_store_dword v240, off, %s, %s sc1" % (srd(S_WS), s(sCNTB)))
        blk += L("s_add_u32 %s, %s, %d" % (s(sT1), s(sCNTB), CNT_O - CNT_H))
        blk += L("buffer_store_dword v240, off, %s, %s sc1" % (srd(S_WS), s(sT1)))
        P.ext(raw(blk))
    P(skip + ":")


def zero_flag_publish(is_A):
    skip = label("nzf")
    o = []
    if is_A:
        o += L("s_lshl_b32 %s, %s, 1" % (s(sT1), s(sTY)))
        o += L("s_cmp_lg_u32 %s, %s" % (s(sT1), s(sM)))
        o += L("s_cbranch_scc1 " + skip)
        off = sP0
    else:
        o += L("s_cmp_lg_u32 %s, 0" % s(sTY))
        o += L("s_cbranch_scc1 " + skip)
        off = sP1_
    o += L("s_cmp_lg_u32 %s, 0" % s(sW))
    o += L("s_cbranch_scc1 " + skip)
    o += raw(L("v_mov_b32 v240, 1") + L("buffer_store_dword v240, off, %s, %s sc1" % (srd(S_DBG), s(sZK if is_A else sZH))))
    o += L(skip + ":")
    return o


sZK, sZH = 86, 87
sCNTO = 88
sH0, sH1 = 89, 90
sR2 = 91
sCT = 92
sLW2 = 93


def common_roles(P):
    P("s_lshl_b32 %s, %s, 2" % (s(sZK), s(sTY)))
    P("s_lshl_b32 %s, %s, 2" % (s(sZH), s(sM)))
    P("s_add_u32 %s, %s, 32" % (s(sZH), s(sZH)))
    P("s_lshl_b32 %s, %s, 8" % (s(sCNTA), s(sTY)))
    P("s_add_u32 %s, %s, %d" % (s(sCNTA), s(sCNTA), CNT_KV))
    P("s_lshl_b32 %s, %s, 8" % (s(sCNTB), s(sM)))
    P("s_add_u32 %s, %s, %d" % (s(sCNTO), s(sCNTB), CNT_O))
    P("s_add_u32 %s, %s, %d" % (s(sCNTB), s(sCNTB), CNT_H))
    P("s_lshl_b32 %s, %s, 2" % (s(sT1), s(sM)))
    P("s_add_u32 %s, %s, %s" % (s(sT1), s(sT1), s(sW)))
    P("s_mul_i32 %s, %s, %d" % (s(sHB0), s(sT1), 112 * 1024))
    P("s_lshl_b32 %s, %s, 15" % (s(sOB), s(sT1)))
    P("s_add_u32 %s, %s, %d" % (s(sOB), s(sOB), WS_OB))


def setup_A(P):
    P("s_mul_i32 %s, %s, 112" % (s(sT1), s(sTY)))
    P("s_mul_i32 %s, %s, %d" % (s(sB4), s(sW), 32 * RS_QKV))
    P("s_add_u32 %s, %s, %s" % (s(sB4), s(sB4), s(sT1)))
    P("s_mul_i32 %s, %s, %d" % (s(sB5), s(sW), 16 * RS_QKV))
    P("s_add_u32 %s, %s, %s" % (s(sB5), s(sB5), s(sT1)))
    P("s_lshl_b32 %s, %s, 7" % (s(sT1), s(sTY)))
    P("s_add_u32 %s, %s, 2560" % (s(sT1), s(sT1)))
    P("s_mul_i32 %s, %s, %d" % (s(sB2), s(sW), 16 * RS_FF))
    P("s_add_u32 %s, %s, %s" % (s(sB2), s(sB2), s(sT1)))
    P("s_lshl_b32 %s, %s, 12" % (s(sT1), s(sTY)))
    P("s_add_u32 %s, %s, %s" % (s(sHB0), s(sHB0), s(sT1)))
    P("s_add_u32 %s, %s, %d" % (s(sHB0), s(sHB0), 80 * 1024 + WS_HB))
    P("s_lshl_b32 %s, %s, 14" % (s(sKV), s(sTY)))
    P("s_add_u32 %s, %s, %s" % (s(sKV), s(sKV), s(sLW32)))
    P("s_add_u32 %s, %s, %d" % (s(sKV), s(sKV), WS_KV))
    P("s_lshl_b32 %s, %s, 12" % (s(sT1), s(sTY)))
    P("s_add_u32 %s, %s, %s" % (s(sOB), s(sOB), s(sT1)))


def setup_F(P):
    P("s_mul_i32 %s, %s, 320" % (s(sT1), s(sTY)))
    P("s_and_b32 %s, %s, 1" % (s(sT2), s(sTY)))
    P("s_lshl_b32 %s, %s, 6" % (s(sT3), s(sT2)))
    P("s_add_u32 %s, %s, %s" % (s(sP0), s(sT1), s(sT3)))
    P("s_add_u32 %s, %s, 128" % (s(sP1_), s(sP0)))
    P("s_xor_b32 %s, %s, 1" % (s(sT2), s(sT2)))
    P("s_lshl_b32 %s, %s, 8" % (s(sT2), s(sT2)))
    P("s_add_u32 %s, %s, %s" % (s(sP2_), s(sT1), s(sT2)))
    P("s_mul_i32 %s, %s, %d" % (s(sT1), s(sW), 16 * RS_FF))
    P("s_add_u32 %s, %s, %s" % (s(sB2), s(sT1), s(sP0)))
    P("s_add_u32 %s, %s, %s" % (s(sB3), s(sT1), s(sP1_)))
    P("s_add_u32 %s, %s, %s" % (s(sB5), s(sT1), s(sP2_)))
    P("s_lshl_b32 %s, %s, 1" % (s(sT1), s(sT1)))
    P("s_add_u32 %s, %s, %s" % (s(sB4), s(sT1), s(sP2_)))
    P("s_add_u32 %s, %s, %d" % (s(sHB0), s(sHB0), WS_HB))
    P("s_lshl_b32 %s, %s, 5" % (s(sT1), s(sP1_)))
    P("s_add_u32 %s, %s, %s" % (s(sHB1), s(sHB0), s(sT1)))
    P("s_lshl_b32 %s, %s, 5" % (s(sT1), s(sP2_)))
    P("s_add_u32 %s, %s, %s" % (s(sHB2), s(sHB0), s(sT1)))
    P("s_lshl_b32 %s, %s, 5" % (s(sT1), s(sP0)))
    P("s_add_u32 %s, %s, %s" % (s(sHB0), s(sHB0), s(sT1)))


def wphi_dma(P):
    P("s_mul_i32 %s, %s, 3136" % (s(sT1), s(sTY)))
    P("s_add_u32 %s, %s, %s" % (s(sT1), s(sT1), s(sLW8)))
    P.ext(dma(S_PHI, vL16, sT1, 0, sLW8, L_WPHI, "wphi"))


def q_work(P, accQ):
    spin_until(P, "buffer_load_dword v254, off, %s, %s sc1" % (srd(S_WS), s(sCNTA)), 16)
    KV = vT
    for r in range(16):
        P("buffer_load_dword %s, %s, %s, %s offen offset:%d sc1" % (v(KV + r), v(vL4), srd(S_WS), s(sKV), r * 256), tag="kvl")
    P("s_lshl_b32 %s, %s, 11" % (s(sT1), s(sW)))
    P("s_add_u32 %s, %s, %d" % (s(sT1), s(sT1), L_KVF))
    P("v_add_u32 v237, %s, %s" % (s(sT1), v(vL16)))
    for k in range(8):
        P("v_cvt_pk_bf16_f32 %s, %s, %s" % (v(KV + k), v(KV + 2 * k), v(KV + 2 * k + 1)))
    P("ds_write_b128 v237, %s" % v(KV, 4))
    P("ds_write_b128 v237, %s offset:1024" % v(KV + 4, 4))
    P("@waitlgkm_all")
    P("s_barrier")
    P("v_add_u32 v237, %d, %s" % (L_KVF, v(vL16)))
    for n in range(8):
        P("ds_read_b128 %s, v237 offset:%d" % (a(A_KVF + 4 * n, 4), n * 1024))
    for j in range(2):
        pk = vT + 32
        lg = ACC_B + 16 * j
        P.ext(feature_logits(accQ[j], pk, lg, j))
    for j in range(2):
        lg = ACC_B + 16 * j
        Pr = [lg + i for i in range(16)]
        TA = [vT + i for i in range(16)]
        P.ext(softmax_pm(Pr, TA, vT + 16))
        num = ACC_B + 32 + 16 * j
        n = 0
        for ft, base in ((0, TA[0]), (1, Pr[0])):
            for sx in range(2):
                P("v_mfma_f32_32x32x16_bf16 %s, %s, %s, %s" % (v(num, 16), a(A_KVF + 16 * j + 8 * ft + 4 * sx, 4), v(base + 4 * sx, 4), "0" if n == 0 else v(num, 16)))
                n += 1
    for j in range(2):
        num = ACC_B + 32 + 16 * j
        t0, t1 = vT + 16, vT + 17
        P("v_mov_b32 %s, %s" % (v(t0), v(num + 12)))
        P("v_mov_b32 %s, %s" % (v(t1), v(num + 12)))
        P("s_nop 0")
        P("v_permlane32_swap_b32 %s, %s" % (v(t0), v(t1)))
        P("v_add_f32 %s, 0x358637bd, %s" % (v(t1), v(t1)))
        P("v_rcp_f32 %s, %s" % (v(t1), v(t1)))
        P("s_nop 0")
        for i in range(16):
            P("v_mul_f32 %s, %s, %s" % (v(num + i), v(num + i), v(t1)))
        for k in range(8):
            P("v_cvt_pk_bf16_f32 %s, %s, %s" % (v(num + k), v(num + 2 * k), v(num + 2 * k + 1)))
        for k in (6, 7):
            P("v_cndmask_b32 %s, %s, 0, %s" % (v(num + k), v(num + k), sHI))
        for sx in range(2):
            P("buffer_store_dwordx4 %s, %s, %s, %s offen offset:%d sc1" % (v(num + 4 * sx, 4), v(vL16), srd(S_WS), s(sOB), (2 * j + sx) * 1024), tag="ost")
    P("@waitvm ost")
    P("s_barrier")
    P.ext(signal(sCNTO))


def program_A(P):
    gK = Group("k", [0, 1], [ACC_A, ACC_A + 16], vTA)
    gV = Group("v", [0, 1], [ACC_A + 32, ACC_A + 48], vTA)
    gF = Group("ffA", [0, 1, 2, 3], [ACC_B + 16 * t for t in range(4)], vTA + 8)
    gQ = Group("q", [0, 1], [ACC_A, ACC_A + 16], vTA)
    groups = [gK, gV, gF, gQ]
    common_roles(P)
    setup_A(P)
    zero_init(P, True)
    wphi_dma(P)
    for ch in group_chunks(groups)[:NSLOT]:
        for g in chunk_dma(ch):
            P.ext(g)
    code_prefetch(P)
    ln_addr_setup(P)
    tile_addr_setup(P, "att", vTA)
    tile_addr_setup(P, "ff", vTA + 8)
    stamp(P, 0)
    layernorm(P)
    stamp(P, 1)
    f_k = G(k_epilogue([ACC_A, ACC_A + 16], [ACC_B, ACC_B + 16]))
    setup = G(exch_addr_setup())
    flagload = [L("buffer_load_dword %s, off, %s, %s sc1" % (v(vFZ1), srd(S_DBG), s(sZK))),
                L("buffer_load_dword %s, off, %s, %s sc1" % (v(vFZ0), srd(S_DBG), s(sZH)))]
    f_v = G(v_epilogue([ACC_A + 32, ACC_A + 48]))
    f_kv = G(kv_tile(ACC_A + 32)) + [check_flag(vFZ1, sZK)] + G(kv_atomics(ACC_A + 32))
    f_ffn = []
    for t in range(4):
        f_ffn += G(ffn_epilogue(ACC_B + 16 * t, vT + 24, sHB0, t * 1024))
    nch_k, nch_v = 4, 4
    cF = nch_k + nch_v
    fillers = [(0, 4, 56, G(wphi_frags()) + setup),
               (1, 2, 56, f_k + flagload),
               (2, 2, 26, f_v),
               (2, 34, 70, f_kv),
               (3, 2, 54, f_ffn)]
    bar_pre = {cF + 2: L("@waitlgkm phiw"), cF + 8: L("@waitvm kvat")}
    bar_post = {0: zero_flag_publish(True), cF + 8: signal(sCNTA)}
    chunks, pre, body = build_p1_stream(groups, fillers, bar_pre, bar_post)
    P("@waitvm wphi")
    P.ext(pre)
    P.ext(body)
    stamp(P, 2)
    P("@waitvm hst")
    P("s_barrier")
    P.ext(check_flag(vFZ0, sZH))
    P.ext(signal(sCNTB))
    stamp(P, 3)
    q_work(P, [ACC_A, ACC_A + 16])
    stamp(P, 4)
    P("s_cmp_eq_u32 %s, 0" % s(sGI))
    P("s_cbranch_scc1 L_exit")
    P("s_branch L_phase2")


def program_F(P):
    gU0 = Group("ffA", [0, 1, 2, 3], [ACC_A + 16 * t for t in range(4)], vTA)
    gU1 = Group("ffB", [0, 1, 2, 3], [ACC_B + 16 * t for t in range(4)], vTA)
    gH = Group("h", [0, 1], [ACC_A, ACC_A + 16], vTA + 8)
    groups = [gU0, gU1, gH]
    common_roles(P)
    setup_F(P)
    zero_init(P, False)
    for ch in group_chunks(groups)[:NSLOT]:
        for g in chunk_dma(ch):
            P.ext(g)
    code_prefetch(P)
    ln_addr_setup(P)
    tile_addr_setup(P, "ff", vTA)
    tile_addr_setup(P, "h", vTA + 8)
    stamp(P, 0)
    layernorm(P)
    stamp(P, 1)
    f0, f1 = [], []
    for t in range(4):
        f0 += G(ffn_epilogue(ACC_A + 16 * t, vT + 24, sHB0, t * 1024))
        f1 += G(ffn_epilogue(ACC_B + 16 * t, vT + 24, sHB1, t * 1024))
    flagload = [L("buffer_load_dword %s, off, %s, %s sc1" % (v(vFZ0), srd(S_DBG), s(sZH)))]
    fillers = [(1, 2, 110, f0 + flagload), (2, 2, 54, f1)]
    chunks, pre, body = build_p1_stream(groups, fillers, {}, {0: zero_flag_publish(False)})
    P.ext(pre)
    P.ext(body)
    stamp(P, 2)
    for t in range(2):
        P.ext(ffn_epilogue(ACC_A + 16 * t, vT + 24 + 8 * t, sHB2, t * 1024))
    P("@waitvm hst")
    P("s_barrier")
    P.ext(check_flag(vFZ0, sZH))
    P.ext(signal(sCNTB))
    stamp(P, 3)
    stamp(P, 4)


P2_ACC = 16
P2_S = 80
P2_H = 96
vD2, vDX, vWA0, vWA1, vWO, vEXW, vEXR, vXD, vOR, vOS = 2, 3, 4, 5, 6, 224, 227, 228, 232, 233


def phase2(P):
    l = v(vL)
    P("L_phase2:")
    P("@flush")
    P("s_waitcnt vmcnt(0) lgkmcnt(0)")
    P("s_barrier")
    P("s_sub_u32 %s, %s, 1" % (s(sCT), s(sGI)))
    P("s_lshl_b32 %s, %s, 7" % (s(sCT), s(sCT)))
    P("s_lshl_b32 %s, %s, 7" % (s(sR2), s(sM)))
    P("s_lshl_b32 %s, %s, 6" % (s(sT1), s(sGH)))
    P("s_add_u32 %s, %s, %s" % (s(sR2), s(sR2), s(sT1)))
    P("v_lshrrev_b32 v220, 3, %s" % l)
    P("v_and_b32 v221, 7, %s" % l)
    P("v_mul_u32_u24 v222, %d, v220" % RS_W2)
    P("v_bfe_u32 v223, v220, 1, 1")
    P("v_lshlrev_b32 v223, 2, v223")
    P("v_xor_b32 v223, v223, v221")
    P("v_lshl_add_u32 %s, v223, 4, v222" % v(vD2))
    P("v_xor_b32 v223, v220, v221")
    P("v_lshl_add_u32 %s, v223, 4, v222" % v(vDX))
    P("v_lshl_add_u32 %s, v221, 4, v222" % v(vOS))
    P("v_lshlrev_b32 v224, 7, v220")
    P("v_lshl_add_u32 v224, v223, 4, v224")
    P("s_add_u32 %s, %s, %d" % (s(sT1), s(sLW16), L_OUTST))
    P("v_add_u32 %s, %s, v224" % (v(vOR), s(sT1)))
    P("s_mul_i32 %s, %s, %d" % (s(sLW2), s(sW), W2STEPS * 2048))
    P("s_add_u32 %s, %s, %d" % (s(sLW2), s(sLW2), L_W2ST))
    P("s_mul_i32 %s, %s, %d" % (s(sB0), s(sW), 28 * 16 * RS_W2))
    P("s_add_u32 %s, %s, %s" % (s(sB0), s(sB0), s(sCT)))
    P("s_mul_i32 %s, %s, %d" % (s(sB1), s(sW), 8 * RS_W2))
    P("s_add_u32 %s, %s, %s" % (s(sB1), s(sB1), s(sCT)))

    def w2_dma(jj):
        return [dma(S_W2, vD2, sB0, (16 * jj + 8 * i) * RS_W2, sLW2, (jj % W2STEPS) * 2048 + 1024 * i, "w2_%d" % jj) for i in range(2)]
    for jj in range(W2STEPS):
        for g in w2_dma(jj):
            P.ext(g)
    for u in range(14):
        P.ext(dma(S_WO, vD2, sB1, 32 * u * RS_W2, sLW8, L_WO + 4096 * u, "wo"))
    P("s_add_u32 %s, %s, %d" % (s(sT1), s(sCT), 448 * RS_W2))
    P.ext(dma(S_WO, vD2, sT1, 0, None, L_WO + 57344, "wo"))
    P("s_lshl_b32 %s, %s, 4" % (s(sT1), s(sW)))
    P("s_add_u32 %s, %s, %s" % (s(sT1), s(sT1), s(sR2)))
    P("s_mul_i32 %s, %s, %d" % (s(sB2), s(sT1), RS_X))
    P("s_add_u32 %s, %s, %s" % (s(sB2), s(sB2), s(sCT)))
    for i in range(2):
        P.ext(dma(S_X, vDX, sB2, 8 * i * RS_X, sLW16, L_XT + 1024 * i, "xt"))
    P("v_lshrrev_b32 v220, 5, %s" % l)
    P("v_bfe_u32 v221, %s, 2, 2" % l)
    P("v_lshl_or_b32 v220, v220, 2, v221")
    P("v_lshlrev_b32 v220, 7, v220")
    P("v_bfe_u32 v221, %s, 4, 1" % l)
    P("v_lshl_add_u32 v220, v221, 5, v220")
    P("v_and_b32 v221, 3, %s" % l)
    P("v_lshl_add_u32 v220, v221, 3, v220")
    P("v_bfe_u32 v221, %s, 3, 1" % l)
    P("s_and_b32 %s, %s, 1" % (s(sT1), s(sW)))
    P("v_xor_b32 v221, %s, v221" % s(sT1))
    P("v_lshl_add_u32 %s, v221, 6, v220" % v(vWO))
    P("v_add_u32 %s, %s, %s" % (v(vWA0), s(sLW2), v(vWO)))
    P("v_xor_b32 v221, 1, v221")
    P("v_lshl_add_u32 v222, v221, 6, v220")
    P("v_add_u32 %s, %s, v222" % (v(vWA1), s(sLW2)))
    P("s_lshr_b32 %s, %s, 1" % (s(sT1), s(sW)))
    P("s_lshl_b32 %s, %s, 2" % (s(sT2), s(sM)))
    P("s_lshl_b32 %s, %s, 1" % (s(sT3), s(sGH)))
    P("s_add_u32 %s, %s, %s" % (s(sT2), s(sT2), s(sT3)))
    P("s_add_u32 %s, %s, %s" % (s(sT3), s(sT2), s(sT1)))
    P("s_mul_i32 %s, %s, %d" % (s(sH0), s(sT3), 112 * 1024))
    P("s_lshl_b32 %s, %s, 15" % (s(sOB), s(sT3)))
    P("s_add_u32 %s, %s, %d" % (s(sOB), s(sOB), WS_OB))
    P("s_xor_b32 %s, %s, 1" % (s(sT1), s(sT1)))
    P("s_add_u32 %s, %s, %s" % (s(sT3), s(sT2), s(sT1)))
    P("s_mul_i32 %s, %s, %d" % (s(sH1), s(sT3), 112 * 1024))
    P("s_mul_i32 %s, %s, %d" % (s(sT1), s(sW), 28 * 1024))
    P("s_add_u32 %s, %s, %s" % (s(sH0), s(sH0), s(sT1)))
    P("s_add_u32 %s, %s, %s" % (s(sH1), s(sH1), s(sT1)))
    if WS_HB:
        P("s_add_u32 %s, %s, %d" % (s(sH0), s(sH0), WS_HB))
        P("s_add_u32 %s, %s, %d" % (s(sH1), s(sH1), WS_HB))
    for d in range(1, 4):
        P("s_xor_b32 %s, %s, %d" % (s(sT1), s(sW), d))
        P("s_mul_i32 %s, %s, %d" % (s(sT1), s(sT1), 3 * 4096))
        P("s_add_u32 %s, %s, %d" % (s(sT1), s(sT1), L_EX + (d - 1) * 4096))
        P("v_add_u32 %s, %s, %s" % (v(vEXW + d - 1), s(sT1), v(vL16)))
    P("s_mul_i32 %s, %s, %d" % (s(sT1), s(sW), 3 * 4096))
    P("s_add_u32 %s, %s, %d" % (s(sT1), s(sT1), L_EX))
    P("v_add_u32 %s, %s, %s" % (v(vEXR), s(sT1), v(vL16)))
    P("v_and_b32 v220, 31, %s" % l)
    P("s_lshr_b32 %s, %s, 1" % (s(sT1), s(sW)))
    P("s_lshl_b32 %s, %s, 5" % (s(sT1), s(sT1)))
    P("v_add_u32 v221, %s, v220" % s(sT1))
    P("v_lshlrev_b32 v222, 7, v221")
    P("s_and_b32 %s, %s, 1" % (s(sT2), s(sW)))
    P("s_lshl_b32 %s, %s, 2" % (s(sT2), s(sT2)))
    P("v_and_b32 v223, 7, v220")
    P("v_xor_b32 v223, %s, v223" % s(sT2))
    P("v_lshl_add_u32 v222, v223, 4, v222")
    P("v_lshrrev_b32 v223, 5, %s" % l)
    P("v_lshl_add_u32 v222, v223, 3, v222")
    P("v_add_u32 v222, %d, v222" % L_OUTST)
    for rq in range(4):
        P("v_xor_b32 %s, %d, v222" % (v(vXD + rq), 16 * rq))
    P("s_lshl_b32 %s, %s, 8" % (s(sT1), s(sGH)))
    P("s_add_u32 %s, %s, %d" % (s(sT1), s(sT1), L_RSTAT))
    P("v_lshlrev_b32 v221, 2, v221")
    P("v_add_u32 v221, %s, v221" % s(sT1))
    P("ds_read_b32 %s, v221" % v(vR))
    P("v_mul_f32 %s, %s, %s" % (v(vR), v(vR), v(vR)))
    for jj in range(28):
        P("@waitvm w2_%d" % jj)
        for c, reg in ((0, vWA0), (1, vWA1)):
            for q in range(2):
                P("ds_read_b64_tr_b16 %s, %s offset:%d" % (a(8 * jj + 4 * c + 2 * q, 2), v(reg), (jj % W2STEPS) * 2048 + 1024 * q), tag="w2r_%d" % jj)
        if jj >= 1 and jj - 1 + W2STEPS < 28:
            P("@waitlgkm w2r_%d" % (jj - 1))
            for g in w2_dma(jj - 1 + W2STEPS):
                P.ext(g)
    P("@waitlgkm_all")
    P("@waitvm wo xt")
    P("s_barrier")
    stamp(P, 5)
    spin_until(P, "buffer_load_dword v254, off, %s, %s sc1" % (srd(S_WS), s(sCNTB)), 16)
    stamp(P, 6)
    items = [(jj, aa) for jj in range(28) for aa in range(2)]
    NB = 32

    def hload(n):
        jj, aa = items[n]
        sb = sH0 if aa == 0 else sH1
        o = []
        if jj % 4 == 0 and jj > 0:
            o += L("s_add_u32 %s, %s, 4096" % (s(sb), s(sb)))
        o += [I("buffer_load_dwordx4 %s, %s, %s, %s offen offset:%d sc1" % (v(P2_H + 4 * (n % NB), 4), v(vL16), srd(S_WS), s(sb), (jj % 4) * 1024), "h")]
        return o
    for n in range(NB):
        P.ext(hload(n))
    for n, (jj, aa) in enumerate(items):
        for c in range(2):
            acc = P2_ACC + 16 * (2 * aa + c)
            P("v_mfma_f32_32x32x16_bf16 %s, %s, %s, %s" % (v(acc, 16), a(8 * jj + 4 * c, 4), v(P2_H + 4 * (n % NB), 4), "0" if jj == 0 else v(acc, 16)))
        if n + NB < len(items):
            P.ext(hload(n + NB))
    stamp(P, 7)
    spin_until(P, "buffer_load_dword v254, off, %s, %s sc1" % (srd(S_WS), s(sCNTO)), 8)
    for kk in range(32):
        if kk % 4 == 0 and kk > 0:
            P("s_add_u32 %s, %s, 4096" % (s(sOB), s(sOB)))
        P("buffer_load_dwordx4 %s, %s, %s, %s offen offset:%d sc1" % (v(P2_H + 4 * kk, 4), v(vL16), srd(S_WS), s(sOB), (kk % 4) * 1024), tag="o")
    for d in range(1, 4):
        acc = P2_ACC + 16 * d
        for q in range(4):
            P("ds_write_b128 %s, %s offset:%d" % (v(vEXW + d - 1), v(acc + 4 * q, 4), q * 1024))
    P("@waitlgkm_all")
    P("s_barrier")
    for d in range(1, 4):
        acc = P2_ACC + 16 * d
        for q in range(4):
            P("ds_read_b128 %s, %s offset:%d" % (v(acc + 4 * q, 4), v(vEXR), (d - 1) * 4096 + q * 1024))
    def wo_reads(kk):
        h, sx = kk // 2, kk % 2
        buf = 4 * (kk % 8)
        return [I("ds_read_b64_tr_b16 %s, %s offset:%d" % (a(buf + 2 * q, 2), v(vWO), (28 * h + 16 * sx + 8 * q) * 128)) for q in range(2)]
    for kk in range(4):
        P.ext(wo_reads(kk))
    adds = []
    for d in range(1, 4):
        for i in range(16):
            adds.append(I("v_add_f32 %s, %s, %s" % (v(P2_ACC + i), v(P2_ACC + i), v(P2_ACC + 16 * d + i))))
    for kk in range(32):
        P("v_mfma_f32_32x32x16_bf16 %s, %s, %s, %s" % (v(P2_S, 16), a(4 * (kk % 8), 4), v(P2_H + 4 * kk, 4), "0" if kk == 0 else v(P2_S, 16)))
        if kk + 4 < 32:
            P.ext(wo_reads(kk + 4))
        if kk >= 4:
            P.ext(adds[:2])
            adds = adds[2:]
    P.ext(adds)
    stamp(P, 8)
    X = P2_H
    for rq in range(4):
        P("ds_read_b64 %s, %s offset:%d" % (v(X + 2 * rq, 2), v(vXD + rq), L_XT - L_OUTST))
    B, S_, T = P2_ACC, P2_S, P2_H + 16
    for i in range(16):
        P("v_mul_f32 %s, %s, %s" % (v(B + i), v(B + i), v(vR)))
    for i in range(16):
        P("v_mul_f32 %s, 0x%x, %s" % (v(T + i), NLOG2E, v(B + i)))
    for i in range(16):
        P("v_exp_f32 %s, %s" % (v(T + i), v(T + i)))
    for i in range(16):
        P("v_add_f32 %s, 1.0, %s" % (v(T + i), v(T + i)))
    for i in range(16):
        P("v_rcp_f32 %s, %s" % (v(T + i), v(T + i)))
    for i in range(16):
        P("v_mul_f32 %s, %s, %s" % (v(B + i), v(B + i), v(S_ + i)))
    U = T + 16
    for k in range(8):
        P("v_lshlrev_b32 %s, 16, %s" % (v(U + 2 * k), v(X + k)))
        P("v_and_b32 %s, 0xffff0000, %s" % (v(U + 2 * k + 1), v(X + k)))
    for i in range(16):
        P("v_fma_f32 %s, %s, %s, %s" % (v(B + i), v(B + i), v(T + i), v(U + i)))
    for k in range(8):
        P("v_cvt_pk_bf16_f32 %s, %s, %s" % (v(B + k), v(B + 2 * k), v(B + 2 * k + 1)))
    for rq in range(4):
        P("ds_write_b64 %s, %s" % (v(vXD + rq), v(B + 2 * rq, 2)))
    P("@waitlgkm_all")
    P("s_barrier")
    for i in range(2):
        P("ds_read_b128 %s, %s offset:%d" % (v(T + 4 * i, 4), v(vOR), 1024 * i))
    for i in range(2):
        if i:
            P("s_add_u32 %s, %s, %d" % (s(sB2), s(sB2), 8 * RS_X))
        P("buffer_store_dwordx4 %s, %s, %s, %s offen" % (v(T + 4 * i, 4), v(vOS), srd(S_OUT), s(sB2)))
    stamp(P, 9)


def finish(P):
    ins = resolve_waits(P.ins)
    ins, nn = pad_hazards(ins)
    return ins, nn


def build():
    uid[0] = 0
    head = Prog()
    prologue(head)
    head("s_cmp_ge_u32 %s, 4" % s(sGI))
    head("s_cbranch_scc1 L_typeF")
    PA = Prog(); PA.ext(head.ins); program_A(PA)
    PF = Prog(); PF.ext(head.ins); program_F(PF)
    insA, nA = finish(PA)
    insF, nF = finish(PF)
    def cut(ins):
        for k, x in enumerate(ins):
            if x.text == "s_cbranch_scc1 L_typeF":
                return k + 1
    ka, kf = cut(insA), cut(insF)
    assert [x.text for x in insA[:ka]] == [x.text for x in insF[:kf]]
    P2 = Prog()
    if OPT.stop_after == "p1":
        P2("L_phase2:")
        P2("s_waitcnt vmcnt(0) lgkmcnt(0)")
    else:
        phase2(P2)
    ins2, n2 = finish(P2)
    text = render(insA) + "\nL_typeF:\n" + render(insF[kf:]) + "\n" + render(ins2) + "\nL_exit:\n    s_endpgm\n"
    stats = dict(nA=len(insA), nF=len(insF), n2=len(ins2), nopA=nA, nopF=nF, nop2=n2)
    return text, stats


HEADER = """; Kernarg layout for this problem (88 bytes, ptrs only, base s[0:1]):
; @launch grid=(256,1,1) block=(256,1,1) lds=%d
.amdgcn_target "amdgcn-amd-amdhsa--gfx950"
.text
.globl %s
.p2align 8
.type %s,@function
%s:
"""
FOOTER = """
.section .rodata,"a"
.p2align 6
.amdhsa_kernel %s
  .amdhsa_next_free_vgpr 512
  .amdhsa_next_free_sgpr 102
  .amdhsa_accum_offset 256
  .amdhsa_group_segment_fixed_size 0
  .amdhsa_kernarg_size 88
  .amdhsa_user_sgpr_count 2
  .amdhsa_user_sgpr_kernarg_segment_ptr 1
  .amdhsa_system_sgpr_workgroup_id_x 1
.end_amdhsa_kernel
"""


def generate(path):
    text, stats = build()
    out = HEADER % (LDS_SIZE, NAME, NAME, NAME) + text + FOOTER % NAME
    open(path, "w").write(out)
    return stats


if __name__ == "__main__":
    import argparse
    ap = argparse.ArgumentParser()
    ap.add_argument("-o", default="out.s")
    ap.add_argument("--stamps", action="store_true")
    ap.add_argument("--stop", default=None)
    a_ = ap.parse_args()
    OPT.stamps = a_.stamps
    OPT.stop_after = a_.stop
    print(generate(a_.o))
```

```python
import re

TRANS = ("v_exp_f32", "v_log_f32", "v_rcp_f32", "v_rsq_f32", "v_sqrt_f32", "v_sin_f32", "v_cos_f32")


def _regs(tok):
    t = tok.strip()
    t = t.lstrip("-")
    if t.startswith("abs(") and t.endswith(")"):
        t = t[4:-1]
    if t.startswith("|") and t.endswith("|"):
        t = t[1:-1]
    m = re.fullmatch(r"([vas])(\d+)", t)
    if m:
        return {(m.group(1), int(m.group(2)))}
    m = re.fullmatch(r"([vas])\[(\d+):(\d+)\]", t)
    if m:
        return {(m.group(1), i) for i in range(int(m.group(2)), int(m.group(3)) + 1)}
    if t == "vcc":
        return {("s", "vcc")}
    if t == "exec":
        return {("s", "exec")}
    if t == "m0":
        return {("s", "m0")}
    if t == "scc":
        return {("s", "scc")}
    return set()


class Inst:
    __slots__ = ("text", "op", "reads", "writes", "kind", "tag", "meta")

    def __init__(self, text, tag=None, meta=None):
        self.text = text.strip()
        self.tag = tag
        self.meta = meta or {}
        self.parse()

    def __repr__(self):
        return self.text

    def parse(self):
        t = self.text
        self.reads, self.writes = set(), set()
        if not t or t.startswith(";") or t.endswith(":") or t.startswith("."):
            self.op, self.kind = "", "label" if t.endswith(":") else "none"
            return
        if t.startswith("@"):
            self.op, self.kind = t.split()[0], "pseudo"
            return
        code = t.split(";")[0].strip()
        parts = code.split(None, 1)
        op = parts[0]
        self.op = op
        rest = parts[1] if len(parts) > 1 else ""
        ops, cur, depth = [], "", 0
        for ch in rest:
            if ch == "[":
                depth += 1
            if ch == "]":
                depth -= 1
            if ch == "," and depth == 0:
                ops.append(cur.strip())
                cur = ""
            else:
                cur += ch
        if cur.strip():
            ops.append(cur.strip())
        mods = ""
        if ops:
            last = ops[-1].split(None, 1)
            ops[-1] = last[0] if last else ""
            mods = last[1] if len(last) > 1 else ""
        R = [_regs(o) for o in ops]
        allr = set().union(*R) if R else set()
        w, r = set(), set()
        if op.startswith("v_mfma"):
            self.kind = "mfma"
            w = R[0]
            r = R[1] | R[2] | R[3]
            self.meta["srcC"] = R[3]
            self.meta["srcAB"] = R[1] | R[2]
        elif op.startswith("ds_read"):
            self.kind = "ds"
            w = R[0]
            r = R[1]
        elif op.startswith("ds_write"):
            self.kind = "ds"
            r = allr
        elif op.startswith("ds_bpermute") or op.startswith("ds_swizzle"):
            self.kind = "ds"
            w = R[0]
            r = set().union(*R[1:])
        elif op.startswith("buffer_load") or op.startswith("global_load"):
            self.kind = "vmem"
            full = " " + rest + " "
            if " lds " in full or op.startswith("global_load_lds"):
                r = allr | {("s", "m0")}
                self.meta["lds_dma"] = True
            else:
                w = R[0]
                r = set().union(*R[1:])
        elif op.startswith("buffer_store") or op.startswith("global_store"):
            self.kind = "vmem"
            r = allr
            self.meta["store"] = True
            if "x4" in op or "x3" in op:
                self.meta["wide_store_data"] = R[0] if op.startswith("buffer_") else R[1]
        elif op.startswith("buffer_atomic") or op.startswith("global_atomic"):
            self.kind = "vmem"
            r = allr
            self.meta["store"] = True
            if " sc0" in (" " + mods):
                w = R[0]
        elif op.startswith("buffer_wbl2") or op.startswith("buffer_inv"):
            self.kind = "vmem"
        elif op.startswith("s_load") or op.startswith("s_memtime") or op.startswith("s_memrealtime"):
            self.kind = "smem"
            w = R[0]
            r = set().union(*R[1:]) if len(R) > 1 else set()
        elif op in ("s_waitcnt", "s_barrier", "s_nop", "s_sleep", "s_setprio", "s_endpgm"):
            self.kind = "ctl"
        elif op.startswith("s_cbranch") or op == "s_branch":
            self.kind = "branch"
            if "scc" in op:
                r = {("s", "scc")}
            if "vcc" in op:
                r = {("s", "vcc")}
            if "exec" in op:
                r = {("s", "exec")}
        elif op.startswith("s_cmp"):
            self.kind = "salu"
            r = allr
            w = {("s", "scc")}
        elif op.startswith("s_"):
            self.kind = "salu"
            w = set(R[0])
            r = set().union(*R[1:]) if len(R) > 1 else set()
            if op.startswith(("s_add", "s_sub", "s_and", "s_or", "s_xor", "s_lshl", "s_lshr", "s_ashr", "s_bfe", "s_min", "s_max", "s_andn2", "s_not")):
                w |= {("s", "scc")}
            if op.startswith(("s_addc", "s_subb", "s_cselect")):
                r |= {("s", "scc")}
            if "saveexec" in op:
                w |= {("s", "exec")}
                r |= {("s", "exec")}
        elif op.startswith("v_"):
            self.kind = "valu"
            base = op.replace("_e32", "").replace("_e64", "")
            if base.startswith("v_cmp"):
                w = R[0]
                r = set().union(*R[1:])
            elif base.startswith("v_permlane") and "swap" in base:
                w = R[0] | R[1]
                r = R[0] | R[1]
                self.meta["permlane"] = True
            elif base.startswith(("v_readfirstlane", "v_readlane")):
                w = R[0]
                r = set().union(*R[1:])
                self.meta["readlane"] = True
            elif base.startswith("v_writelane"):
                w = R[0]
                r = allr
            elif base.startswith(("v_fmac", "v_dot2c", "v_pk_fmac")):
                w = R[0]
                r = allr
            elif base.startswith(("v_add_co", "v_sub_co", "v_addc_co", "v_subb_co")):
                w = R[0] | R[1]
                r = set().union(*R[2:])
            else:
                w = R[0]
                r = set().union(*R[1:]) if len(R) > 1 else set()
                if base.startswith("v_cndmask") and len(R) == 3:
                    r |= {("s", "vcc")}
            if "_dpp" in base:
                self.meta["dpp"] = True
                r |= w
            if base.startswith("v_dot2"):
                self.meta["dot"] = base
                self.meta["dotC"] = R[3] if len(R) > 3 else R[0]
            if base in TRANS:
                self.meta["trans"] = True
            if base.startswith("v_accvgpr"):
                self.meta["accmov"] = True
        else:
            raise ValueError("unknown instruction: " + t)
        self.reads, self.writes = r, w


def I(text, tag=None, **meta):
    return Inst(text, tag, dict(meta))


def is_vreg(r):
    return r[0] in ("v", "a")


def states_of(inst):
    if inst.kind in ("label", "none", "pseudo"):
        return 0
    if inst.op == "s_nop":
        return int(inst.text.split()[1], 0) + 1
    return 1


def resolve_waits(insts, vm_init=None):
    out = []
    vm = []
    lg = []

    def emit_wait(vmn=None, lgn=None):
        s = "s_waitcnt"
        if vmn is not None:
            s += " vmcnt(%d)" % min(vmn, 63)
        if lgn is not None:
            s += " lgkmcnt(%d)" % min(lgn, 15)
        out.append(I(s))

    def need(queue, pred):
        idx = None
        for k, q in enumerate(queue):
            if pred(q):
                idx = k
        if idx is None:
            return None
        return len(queue) - 1 - idx

    for ins in insts:
        if ins.meta.get("raw"):
            out.append(ins)
            continue
        if ins.kind == "pseudo":
            p = ins.text.split()
            if p[0] == "@cost":
                continue
            if p[0] == "@flushlg":
                lg = []
                continue
            if p[0] == "@waitvm":
                tags = set(p[1:])
                n = need(vm, lambda q: q.tag in tags)
                if n is not None:
                    emit_wait(vmn=n)
                    vm = vm[len(vm) - min(n, 63):] if n > 0 else []
                continue
            if p[0] == "@waitlgkm":
                tags = set(p[1:])
                n = need(lg, lambda q: q.tag in tags)
                if n is not None:
                    emit_wait(lgn=n)
                    lg = lg[len(lg) - min(n, 15):] if n > 0 else []
                continue
            if p[0] == "@waitvm_all":
                if vm:
                    emit_wait(vmn=0)
                    vm = []
                continue
            if p[0] == "@waitlgkm_all":
                if lg:
                    emit_wait(lgn=0)
                    lg = []
                continue
            if p[0] == "@flush":
                vm, lg = [], []
                continue
            if p[0] == "@flushvm":
                vm = []
                continue
            if p[0] == "@assert_empty":
                assert not vm and not lg, "queues not empty at " + ins.text
                continue
            raise ValueError(ins.text)
        if ins.op == "s_waitcnt":
            m = re.search(r"vmcnt\((\d+)\)", ins.text)
            if m:
                n = int(m.group(1))
                vm = vm[len(vm) - n:] if 0 < n < len(vm) else ([] if n == 0 else vm)
            m = re.search(r"lgkmcnt\((\d+)\)", ins.text)
            if m:
                n = int(m.group(1))
                lg = lg[len(lg) - n:] if 0 < n < len(lg) else ([] if n == 0 else lg)
            out.append(ins)
            continue
        touched = ins.reads | ins.writes | ins.meta.get("also_wait", set())
        if touched:
            nv = need(vm, lambda q: q.writes & touched)
            smem_pending = any(q.kind == "smem" for q in lg)
            nl = need(lg, lambda q: q.writes & touched)
            if nl is not None and smem_pending:
                nl = 0
            if nv is not None or nl is not None:
                emit_wait(vmn=nv, lgn=nl)
                if nv is not None:
                    k = min(nv, 63)
                    vm = vm[len(vm) - k:] if k > 0 else []
                if nl is not None:
                    k = min(nl, 15)
                    lg = lg[len(lg) - k:] if k > 0 else []
        out.append(ins)
        if ins.kind == "vmem":
            vm.append(ins)
        elif ins.kind in ("ds", "smem"):
            lg.append(ins)
    return out


def pad_hazards(insts, verbose=False):
    out = []
    hist = []
    total = 0
    nnop = 0
    LOOK = 24

    def required(prod, cons):
        req = 0
        pw, pr = prod.writes, prod.reads
        cr, cw = cons.reads, cons.writes
        pk, ck = prod.kind, cons.kind
        vw = {x for x in pw if is_vreg(x)}
        sw = {x for x in pw if x[0] == "s"}
        if pk == "valu":
            if ck == "mfma" and vw & cr:
                req = max(req, 2)
            if ck == "valu" and cons.meta.get("dpp") and vw & cr:
                req = max(req, 2)
            if ck == "valu" and cons.meta.get("permlane") and vw & cr:
                req = max(req, 2)
            if ck == "valu" and cons.meta.get("readlane") and vw & cr:
                req = max(req, 1)
            if prod.meta.get("trans") and ck == "valu" and vw & cr:
                req = max(req, 1)
            if prod.meta.get("dot"):
                if vw & (cr | cw):
                    same = cons.meta.get("dot") == prod.meta.get("dot")
                    onlyC = same and not (vw & (cr - cons.meta.get("dotC", set()))) and (vw & cons.meta.get("dotC", set()))
                    if not onlyC:
                        req = max(req, 3)
            if sw:
                sw2 = sw - {("s", "scc")}
                if ck == "valu" and sw2 & cr:
                    req = max(req, 2)
                if ck == "vmem" and sw2 & cr:
                    req = max(req, 5)
                if ck in ("salu", "branch", "smem") and sw2 & cr:
                    req = max(req, 2)
                if ("s", "exec") in sw:
                    req = max(req, 5)
        if pk == "mfma":
            if ck == "mfma":
                if vw & cons.meta["srcAB"]:
                    req = max(req, 12)
                if vw & cons.meta["srcC"] and cons.meta["srcC"] != vw:
                    req = max(req, 10)
                if vw & cw and not (vw & cons.meta["srcC"]):
                    req = max(req, 12)
            elif vw & (cr | cw):
                req = max(req, 12)
            if ck == "valu" and prod.meta["srcC"] & cw:
                req = max(req, 7)
        if pk == "salu" and ("s", "m0") in pw and cons.meta.get("lds_dma"):
            req = max(req, 1)
        if pk == "vmem" and prod.meta.get("wide_store_data"):
            if prod.meta["wide_store_data"] & cw:
                req = max(req, 2)
        return req

    for ins in insts:
        if ins.kind in ("label", "none"):
            out.append(ins)
            continue
        assert ins.kind != "pseudo", ins.text
        need = 0
        for prod, after in hist:
            req = required(prod, ins)
            if req:
                have = total - after
                if req - have > need:
                    need = req - have
                    if verbose:
                        print("hazard", prod.text, "->", ins.text, req, have)
        while need > 0:
            k = min(need, 16)
            out.append(I("s_nop %d" % (k - 1)))
            total += k
            need -= k
            nnop += 1
        out.append(ins)
        total += states_of(ins)
        hist.append((ins, total))
        if len(hist) > LOOK:
            hist.pop(0)
    return out, nnop


def render(insts):
    lines = []
    for i in insts:
        if i.kind == "label":
            lines.append(i.text)
        else:
            lines.append("    " + i.text)
    return "\n".join(lines)


def interleave(slots, fillers, start=0, end=None):
    end = len(slots) if end is None else end
    n = end - start
    m = len(fillers)
    pos = 0
    for k in range(n):
        tgt = (m * (k + 1) + n - 1) // n if k < n - 1 else m
        tgt = min(tgt, m)
        slots[start + k].extend(fillers[pos:tgt])
        pos = tgt
```

```python
import sys, os
sys.path.insert(0, os.path.dirname(os.path.abspath(__file__)))
from asmlib import I, Inst, resolve_waits, pad_hazards, render

NAME = "recurrent_scan__linear_kernel_hedgehog__glu_gated_swiglu__prompt_kernel"

class Opt:
    stamps = False
    stop_after = None
    spin_max = 1 << 17
    prefetch_code = True
    cyc = False
    no_dma = False
    no_bar = False
    no_reads = False
    no_fill = False
    hot_w = False
OPT = Opt()

LOG2E = 0x3FB8AA3B
NLOG2E = 0xBFB8AA3B
RS_X, RS_QKV, RS_FF, RS_W2 = 896, 2688, 3584, 896
WS_HB = 0
WS_OB = WS_HB + 16 * 4 * 112 * 1024
WS_KV = WS_OB + 16 * 4 * 32 * 1024
WS_CNT = WS_KV + 16 * 8192
CNT_KV, CNT_H, CNT_O = WS_CNT, WS_CNT + 2048, WS_CNT + 2048 + 4096
WS_TS = WS_CNT + 16384
WS_SIZE = WS_TS + 256 * 4 * 128
SLOT = 16384
NSLOT = 5
L_XST = 81920
XST_W = 16896
XROW = 528
L_PHI = 81920
L_V = L_PHI + 32768
L_WPHI = 149504
L_RSTAT = 163328
L_WO = 0
L_W2ST = 58368
W2STEPS = 10
L_KVF = 140288
L_XT = 148480
L_EX = 58368
L_OUTST = 107520
LDS_SIZE = 163840

S_X, S_QKV, S_PHI, S_WO, S_W1, S_W3, S_W2, S_OUT, S_DBG, S_WS = 4, 8, 12, 16, 20, 24, 28, 32, 36, 40
def srd(b): return "s[%d:%d]" % (b, b + 3)
sW, sM, sGI, sGH, sTY = 44, 45, 46, 47, 48
sT0, sT1, sT2, sT3 = 49, 50, 51, 52
sONES, sE0, sE1 = 53, 54, 55
sLW16, sLW32, sLW8 = 56, 57, 58
sB0, sB1, sB2, sB3, sB4, sB5 = 62, 63, 64, 65, 66, 67
sHB0, sHB1, sHB2 = 68, 69, 70
sSOFF = 71
sKV, sOB, sCNTA, sCNTB = 72, 73, 74, 75
sSPIN = 76
sHI = "s[60:61]"
sTS = 78
sTSB = 77
sP0, sP1_, sP2_, sP3 = 80, 81, 82, 83

vTID, vL = 0, 1
ACC_A, ACC_B = 16, 80
def XR(p, j): return 16 + (j * 4 + p) * 4
vT = 144
vDQ, vDG, vDU, vDG64, vDU64 = 2, 3, 4, 5, 6
vR, vC1, vCS, vMASKF = 7, 8, 9, 10
vL16 = 11
vL4 = 12
vFZ0, vFZ1 = 13, 14
vTA = 192
vXA = 208
vKA = 216
vMISC = 220
A_X = 0
A_WB = 112
A_PHI = 144
A_KVF = 160


def v(i, n=1): return "v%d" % i if n == 1 else "v[%d:%d]" % (i, i + n - 1)
def a(i, n=1): return "a%d" % i if n == 1 else "a[%d:%d]" % (i, i + n - 1)
def s(i, n=1): return "s%d" % i if n == 1 else "s[%d:%d]" % (i, i + n - 1)


class Prog:
    def __init__(self):
        self.ins = []
    def __call__(self, text, tag=None, **meta):
        for line in text.strip().split("\n"):
            line = line.strip()
            if line:
                self.ins.append(I(line, tag, **meta))
        return self
    def ext(self, lst):
        for x in lst:
            if isinstance(x, (list, tuple)):
                self.ext(x)
            else:
                self.ins.append(x)


def L(text, tag=None):
    return [I(x.strip(), tag) for x in text.strip().split("\n") if x.strip()]


def stamp(P, idx, final=False):
    if not OPT.stamps:
        return
    P("s_waitcnt lgkmcnt(0)")
    P("@flushlg")
    P("v_writelane_b32 v249, %s, %d" % (s(sTS), PEND[0]))
    P("%s %s" % ("s_memtime" if OPT.cyc else "s_memrealtime", s(sTS, 2)))
    keep = PEND[0]
    PEND[0] = idx
    if final:
        P("s_waitcnt lgkmcnt(0)")
        P("@flushlg")
        P("v_writelane_b32 v249, %s, %d" % (s(sTS), idx))
        P("v_lshlrev_b32 v250, 2, %s" % v(vL))
        P("s_mov_b64 exec, 0xffffffff")
        P("buffer_store_dword v249, v250, %s, %s offen" % (srd(S_WS), s(sTSB)))
        P("s_mov_b64 exec, -1")


uid = [0]
PEND = [15]
def label(base):
    uid[0] += 1
    return "L_%s_%d" % (base, uid[0])


def spin_until(P, load_text, want, shift_mask=None):
    lab, done = label("spin"), label("spun")
    P("@waitvm_all")
    P("s_mov_b32 %s, %d" % (s(sSPIN), OPT.spin_max))
    P(lab + ":")
    P(load_text)
    P("s_waitcnt vmcnt(0)")
    P("@flushvm")
    P("v_readfirstlane_b32 %s, v254" % s(sT3))
    P("s_nop 1")
    P("s_cmp_eq_u32 %s, %d" % (s(sT3), want))
    P("s_cbranch_scc1 " + done)
    P("s_sub_u32 %s, %s, 1" % (s(sSPIN), s(sSPIN)))
    P("s_cmp_eq_u32 %s, 0" % s(sSPIN))
    P("s_cbranch_scc1 " + done)
    P("s_sleep 1")
    P("s_branch " + lab)
    P(done + ":")


def prologue(P):
    P("s_cmp_ge_u32 s2, 256")
    P("s_cbranch_scc1 L_exit")
    if OPT.stamps:
        P("%s %s" % ("s_memtime" if OPT.cyc else "s_memrealtime", s(sTS, 2)))
        PEND[0] = 15
    for base, off in ((S_X, 0), (S_QKV, 8), (S_W1, 40), (S_W3, 48), (S_PHI, 16), (S_WO, 24), (S_W2, 56), (S_OUT, 64), (S_DBG, 72), (S_WS, 80)):
        P("s_load_dwordx2 %s, s[0:1], %d" % (s(base, 2), off))
    P("v_and_b32 %s, 63, v0" % v(vL))
    P("v_lshrrev_b32 v15, 6, v0")
    P("s_nop 0")
    P("v_readfirstlane_b32 %s, v15" % s(sW))
    P("s_and_b32 %s, s2, 7" % s(sT0))
    P("s_lshr_b32 %s, s2, 3" % s(sT1))
    P("s_and_b32 %s, %s, 1" % (s(sGH), s(sT0)))
    P("s_lshr_b32 %s, %s, 1" % (s(sT0), s(sT0)))
    P("s_lshl_b32 %s, %s, 2" % (s(sT0), s(sT0)))
    P("s_lshr_b32 %s, %s, 3" % (s(sM), s(sT1)))
    P("s_add_u32 %s, %s, %s" % (s(sM), s(sM), s(sT0)))
    P("s_and_b32 %s, %s, 7" % (s(sGI), s(sT1)))
    P("s_and_b32 %s, %s, 3" % (s(sTY), s(sGI)))
    P("s_lshl_b32 %s, %s, 2" % (s(sT0), s(sGH)))
    P("s_add_u32 %s, %s, %s" % (s(sTY), s(sTY), s(sT0)))
    P("v_lshrrev_b32 v220, 3, %s" % v(vL))
    P("v_and_b32 v221, 7, %s" % v(vL))
    P("v_mul_u32_u24 v222, %d, v220" % RS_X)
    P("v_lshl_add_u32 v222, v221, 4, v222")
    P("s_lshl_b32 %s, %s, 7" % (s(sT0), s(sM)))
    P("s_lshl_b32 %s, %s, 5" % (s(sT1), s(sW)))
    P("s_add_u32 %s, %s, %s" % (s(sT0), s(sT0), s(sT1)))
    P("s_mul_i32 %s, %s, %d" % (s(sT0), s(sT0), RS_X))
    sizes = {S_X: 2048 * 896, S_QKV: 448 * 2688, S_PHI: 16 * 1568, S_WO: 448 * 896, S_W1: 448 * 3584, S_W3: 448 * 3584,
             S_W2: 1792 * 896, S_OUT: 2048 * 896, S_DBG: 256, S_WS: WS_SIZE}
    for b, sz in sizes.items():
        P("s_mov_b32 %s, %d" % (s(b + 2), sz))
        P("s_mov_b32 %s, 0x20000" % s(b + 3))
    P("s_waitcnt lgkmcnt(0)")
    P("@flush")
    stamp(P, 10)
    for p in range(4):
        P("s_add_u32 %s, %s, %d" % (s(sT1), s(sT0), p * 8 * RS_X))
        for j in range(7):
            P("buffer_load_dwordx4 %s, v222, %s, %s offen offset:%d" % (v(XR(p, j), 4), srd(S_X), s(sT1), j * 128), tag="x%d" % p)
    stamp(P, 11)
    P("s_mov_b32 %s, 0x3f803f80" % s(sONES))
    P("s_mov_b32 %s, 0x00003f80" % s(sE0))
    P("s_mov_b32 %s, 0x3f800000" % s(sE1))
    P("s_mov_b32 s60, 0")
    P("s_mov_b32 s61, -1")
    P("s_lshl_b32 %s, %s, 11" % (s(sLW16), s(sW)))
    P("s_lshl_b32 %s, %s, 12" % (s(sLW32), s(sW)))
    P("s_lshl_b32 %s, %s, 10" % (s(sLW8), s(sW)))
    P("v_lshlrev_b32 %s, 4, %s" % (v(vL16), v(vL)))
    P("v_lshlrev_b32 %s, 2, %s" % (v(vL4), v(vL)))
    P("v_bfe_u32 v223, v220, 1, 1")
    P("v_lshlrev_b32 v223, 2, v223")
    P("v_xor_b32 v223, v223, v221")
    P("v_lshlrev_b32 v224, 4, v223")
    P("v_mul_u32_u24 v225, %d, v220" % RS_QKV)
    P("v_add_u32 %s, v225, v224" % v(vDQ))
    P("v_mul_u32_u24 v225, %d, v220" % RS_FF)
    P("v_add_u32 %s, v225, v224" % v(vDG))
    P("v_xor_b32 v224, 32, v224")
    P("v_add_u32 %s, v225, v224" % v(vDU))
    P("v_lshrrev_b32 v225, 2, %s" % v(vL))
    P("v_mul_u32_u24 v225, %d, v225" % RS_FF)
    P("v_and_b32 v224, 3, %s" % v(vL))
    P("v_lshlrev_b32 v224, 4, v224")
    P("v_add_u32 %s, v225, v224" % v(vDG64))
    P("v_xor_b32 v224, 32, v224")
    P("v_add_u32 %s, v225, v224" % v(vDU64))
    if OPT.stamps:
        P("s_lshl_b32 %s, s2, 2" % s(sTSB))
        P("s_add_u32 %s, %s, %s" % (s(sTSB), s(sTSB), s(sW)))
        P("s_lshl_b32 %s, %s, 7" % (s(sTSB), s(sTSB)))
        P("s_add_u32 %s, %s, %d" % (s(sTSB), s(sTSB), WS_TS))


def code_prefetch(P):
    if not OPT.prefetch_code:
        return
    P("s_getpc_b64 s[84:85]")
    P("L_pcref_%d:" % uid[0])
    P("s_lshr_b32 %s, s2, 3" % s(sT2))
    P("s_and_b32 %s, %s, 7" % (s(sT2), s(sT2)))
    P("s_lshl_b32 %s, %s, 2" % (s(sT2), s(sT2)))
    P("s_add_u32 %s, %s, %s" % (s(sT2), s(sT2), s(sW)))
    P("s_lshl_b32 %s, %s, 11" % (s(sT2), s(sT2)))
    P("s_sub_u32 s84, s84, L_pcref_%d-%s" % (uid[0], NAME))
    P("s_subb_u32 s85, s85, 0")
    P("v_and_b32 v251, 15, %s" % v(vL))
    P("v_lshlrev_b32 v251, 7, v251")
    P("v_add_u32 v251, %s, v251" % s(sT2))
    P("v_min_u32 v251, L_exit-%s, v251" % NAME)
    P("global_load_dword v252, v251, s[84:85]", tag="pf")
    uid[0] += 1


def dma(srd_base, voff, sbase, soff_const, ldsbase_s, lds_const, tag, extra=""):
    g = []
    g += L("s_add_u32 %s, %s, %d" % (s(sSOFF), s(sbase), soff_const)) if soff_const else L("s_mov_b32 %s, %s" % (s(sSOFF), s(sbase)))
    if ldsbase_s is None:
        g = L("s_mov_b32 m0, %d" % lds_const) + g
    else:
        g = L("s_add_u32 m0, %s, %d" % (s(ldsbase_s), lds_const)) + g
    g += [I("buffer_load_dwordx4 %s, %s, %s offen lds%s" % (v(voff), srd(srd_base), s(sSOFF), extra), tag)]
    return g


class Chunk:
    def __init__(self, kind, row0, nrows, idx):
        self.kind, self.row0, self.nrows, self.idx = kind, row0, nrows, idx
        self.slot = SLOT * (idx % NSLOT)
        self.tag = "c%d" % idx


def chunk_dma(ch):
    k, r0, sl, tag = ch.kind, ch.row0, ch.slot, ch.tag
    if OPT.hot_w:
        r0 = 0
    out = []
    if k in ("ffA", "ffB"):
        sb = sB2 if k == "ffA" else sB3
        for blk, (sr, vo) in enumerate(((S_W1, vDG), (S_W3, vDU))):
            for i in range(2):
                out.append(dma(sr, vo, sb, (r0 + 8 * i) * RS_FF, sLW16, sl + blk * 8192 + i * 1024, tag))
    elif k in ("q", "k", "v"):
        sec = {"q": 0, "k": 896, "v": 1792}[k]
        if ch.nrows == 128:
            for i in range(4):
                out.append(dma(S_QKV, vDQ, sB4, (r0 + 8 * i) * RS_QKV + sec, sLW32, sl + i * 1024, tag))
        else:
            for i in range(2):
                out.append(dma(S_QKV, vDQ, sB5, (r0 + 8 * i) * RS_QKV + sec, sLW16, sl + i * 1024, tag))
    elif k == "h":
        if ch.nrows == 128:
            for blk, (sr, vo) in enumerate(((S_W1, vDG64), (S_W3, vDU64))):
                for i in range(2):
                    out.append(dma(sr, vo, sB4, (r0 + 16 * i) * RS_FF, sLW16, sl + blk * 8192 + i * 1024, tag))
        else:
            for blk, (sr, vo) in enumerate(((S_W1, vDG64), (S_W3, vDU64))):
                out.append(dma(sr, vo, sB5, r0 * RS_FF, sLW8, sl + blk * 8192, tag))
    return out


def tile_addr_setup(P, kind, base):
    l = v(vL)
    P("v_lshrrev_b32 v220, 5, %s" % l)
    P("v_bfe_u32 v221, %s, 4, 1" % l)
    P("v_bfe_u32 v222, %s, 2, 2" % l)
    P("v_and_b32 v223, 3, %s" % l)
    P("v_bfe_u32 v224, %s, 3, 1" % l)
    P("v_lshl_add_u32 v225, v220, 3, v222")
    n = 0
    if kind == "ff":
        P("v_lshlrev_b32 v226, 7, v225")
        P("v_lshl_add_u32 v226, v221, 13, v226")
        P("v_lshl_add_u32 v226, v223, 3, v226")
        P("v_lshl_or_b32 v227, v224, 1, v221")
        for t in range(4):
            P("v_xor_b32 v228, %d, v227" % t)
            P("v_lshl_add_u32 %s, v228, 5, v226" % v(base + t))
        n = 4
    elif kind == "att":
        P("v_lshlrev_b32 v226, 7, v225")
        P("v_lshlrev_b32 v227, 5, v221")
        P("v_lshl_add_u32 v227, v223, 3, v227")
        P("v_lshlrev_b32 v228, 6, v224")
        for j in range(2):
            P("v_add_u32 v229, %d, v227" % (56 * j))
            P("v_xor_b32 v229, v229, v228")
            P("v_add_u32 %s, v229, v226" % v(base + j))
        n = 2
    elif kind == "h":
        P("v_lshlrev_b32 v226, 6, v225")
        P("v_lshl_add_u32 v226, v221, 13, v226")
        P("v_lshl_add_u32 v226, v223, 3, v226")
        for t in range(2):
            P("v_xor_b32 v228, %d, v221" % t)
            P("v_lshl_add_u32 %s, v228, 5, v226" % v(base + t))
        n = 2
    for t in range(n):
        P("v_add_u32 %s, 0x4000, %s" % (v(base + 4 + t), v(base + t)))


def tile_reads(addr_base, t, ch, srow, rowbytes, buf):
    off = ch.slot + srow * 16 * rowbytes
    reg = addr_base + t
    if ch.slot >= 65536:
        reg, off = addr_base + 4 + t, off - 16384
    assert 0 <= off and off + 4 * rowbytes <= 65535
    return [I("ds_read_b64_tr_b16 %s, %s offset:%d" % (a(buf, 2), v(reg), off)),
            I("ds_read_b64_tr_b16 %s, %s offset:%d" % (a(buf + 2, 2), v(reg), off + 4 * rowbytes))]


class Group:
    def __init__(self, kind, tiles, accs, addr_base):
        self.kind, self.tiles, self.accs, self.addr_base = kind, tiles, accs, addr_base


def build_p1_stream(groups, fillers, bar_pre=None, bar_post=None):
    bar_pre, bar_post = bar_pre or {}, bar_post or {}
    chunks, mf = [], []
    for gi, g in enumerate(groups):
        four = len(g.tiles) == 4
        plan = [(64 * c, 64) for c in range(7)] if four else [(0, 128), (128, 128), (256, 128), (384, 64)]
        rowbytes = 64 if g.kind == "h" else 128
        g.first_chunk = len(chunks)
        for (r0, nr) in plan:
            ch = Chunk(g.kind, r0, nr, len(chunks))
            chunks.append(ch)
            for sr in range(nr // 16):
                for ti, t in enumerate(g.tiles):
                    mf.append(dict(g=gi, ch=ch, srow=sr, t=t, acc=g.accs[ti], ks=(r0 // 16) + sr, rowbytes=rowbytes,
                                   addr=g.addr_base, first_in_chunk=(sr == 0 and ti == 0)))
    N = len(mf)
    LA = 4
    for n, m in enumerate(mf):
        m["buf"] = A_WB + 4 * (n % 8)
    slots = [[] for _ in range(N)]
    pre = []

    def reads(m):
        return tile_reads(m["addr"], m["t"], m["ch"], m["srow"], m["rowbytes"], m["buf"])
    pre += L("@waitvm %s" % chunks[0].tag) + L("s_barrier") + bar_post.get(0, [])
    for n in range(LA):
        pre += reads(mf[n])
    pending_dma = []
    for n, m in enumerate(mf):
        sl = slots[n]
        C = "0" if m["ks"] == 0 else v(m["acc"], 16)
        sl.append(I("v_mfma_f32_32x32x16_bf16 %s, %s, %s, %s" % (v(m["acc"], 16), a(m["buf"], 4), a(A_X + 4 * m["ks"], 4), C)))
        if n + LA < N:
            nx = mf[n + LA]
            if nx["first_in_chunk"]:
                c = nx["ch"].idx
                sl += bar_pre.get(c, []) + L("@waitvm %s" % nx["ch"].tag) + ([] if OPT.no_bar else L("s_barrier")) + bar_post.get(c, [])
                nc = c + NSLOT - 2
                if c >= 2 and nc < len(chunks) and not OPT.no_dma:
                    pending_dma += chunk_dma(chunks[nc])
            if not OPT.no_reads:
                sl += reads(nx)
        if pending_dma:
            sl += pending_dma.pop(0)
    assert not pending_dma
    for gi, lo, hi, fl in ([] if OPT.no_fill else fillers):
        idx = [n for n, m in enumerate(mf) if m["g"] == gi]
        place_fillers(slots, idx[lo:hi], fl)
    if OPT.stamps:
        seen = set()
        for n, m in enumerate(mf):
            if m["g"] not in seen and m["g"] > 0:
                Pq = Prog(); stamp(Pq, 11 + m["g"]); slots[n] = Pq.ins + slots[n]
            seen.add(m["g"])
    body = []
    for sl in slots:
        body += sl
    return chunks, pre, body


def group_chunks(groups):
    chunks = []
    for g in groups:
        plan = [(64 * c, 64) for c in range(7)] if len(g.tiles) == 4 else [(0, 128), (128, 128), (256, 128), (384, 64)]
        for (r0, nr) in plan:
            chunks.append(Chunk(g.kind, r0, nr, len(chunks)))
    return chunks


def place_fillers(slots, idx, fl):
    total = sum(len(g) for g in fl)
    n = len(idx)
    pos, done = 0, 0
    for k, n_ in enumerate(idx):
        tgt = total * (k + 1) / n
        while pos < len(fl) and (done + len(fl[pos]) / 2.0 <= tgt or k == n - 1):
            slots[n_] += fl[pos]
            done += len(fl[pos])
            pos += 1
    assert pos == len(fl)


def G(lst):
    return [[x] for x in lst]


def layernorm(P):
    T = vT
    for p in range(4):
        regs = [XR(p, j) + d for j in range(7) for d in range(4)]
        sA, sB_, qA, qB = T, T + 1, T + 2, T + 3
        for k, x in enumerate(regs):
            sa, qa = (sA, qA) if k % 2 == 0 else (sB_, qB)
            P("v_dot2_f32_bf16 %s, %s, %s, %s" % (v(sa), v(x), s(sONES), "0" if k < 2 else v(sa)))
            P("v_dot2_f32_bf16 %s, %s, %s, %s" % (v(qa), v(x), v(x), "0" if k < 2 else v(qa)))
        P("v_add_f32 %s, %s, %s" % (v(sA), v(sA), v(sB_)))
        P("v_add_f32 %s, %s, %s" % (v(qA), v(qA), v(qB)))
        for ctl in ("quad_perm:[1,0,3,2]", "quad_perm:[2,3,0,1]", "row_half_mirror"):
            P("v_add_f32_dpp %s, %s, %s %s row_mask:0xf bank_mask:0xf" % (v(sA), v(sA), v(sA), ctl))
            P("v_add_f32_dpp %s, %s, %s %s row_mask:0xf bank_mask:0xf" % (v(qA), v(qA), v(qA), ctl))
        inv = 0x3B124925
        P("v_mul_f32 %s, 0x%x, %s" % (v(sA), inv, v(sA)))
        P("v_mul_f32 %s, 0x%x, %s" % (v(qA), inv, v(qA)))
        P("v_fma_f32 %s, -%s, %s, %s" % (v(qA), v(sA), v(sA), v(qA)))
        P("v_cvt_pk_bf16_f32 %s, 0, %s" % (v(sA), v(sA)))
        P("v_max_f32 %s, 0, %s" % (v(qA), v(qA)))
        P("v_sub_f32 %s, 0, %s" % (v(sB_), v(sA)))
        P("v_cvt_pk_bf16_f32 %s, 0, %s" % (v(qA), v(qA)))
        P("v_add_f32 %s, 0x3727c5ac, %s" % (v(qA), v(qA)))
        P("v_cvt_pk_bf16_f32 %s, 0, %s" % (v(qA), v(qA)))
        P("v_sqrt_f32 %s, %s" % (v(qA), v(qA)))
        tt = T + 4
        first = True
        for b0 in range(0, 28, 4):
            batch = regs[b0:b0 + 4]
            for k, x in enumerate(batch):
                P("v_dot2_f32_bf16 %s, %s, %s, %s" % (v(tt + 2 * k), v(x), s(sE0), v(sB_)))
                P("v_dot2_f32_bf16 %s, %s, %s, %s" % (v(tt + 2 * k + 1), v(x), s(sE1), v(sB_)))
            if first:
                P("v_cvt_pk_bf16_f32 %s, 0, %s" % (v(qA), v(qA)))
                first = False
            for k, x in enumerate(batch):
                P("v_cvt_pk_bf16_f32 %s, %s, %s" % (v(x), v(tt + 2 * k), v(tt + 2 * k + 1)))
            j = b0 // 4
            if j == 0:
                P("v_rcp_f32 %s, %s" % (v(qA), v(qA)))
            if j < 4:
                P("ds_write_b128 v230, %s offset:%d" % (v(XR(p, j), 4), p * 8 * XROW + j * 128))
        P("ds_write_b32 v231, %s offset:%d" % (v(qA), p * 32))
    for sx in range(16):
        P("ds_read_b128 %s, v232 offset:%d" % (a(A_X + 4 * sx, 4), sx * 32))
    for p in range(4):
        for j in range(4, 7):
            P("ds_write_b128 v230, %s offset:%d" % (v(XR(p, j), 4), p * 8 * XROW + (j - 4) * 128))
    for sx in range(12):
        P("ds_read_b128 %s, v232 offset:%d" % (a(A_X + 64 + 4 * sx, 4), sx * 32))
    P("ds_read_b32 %s, v233" % v(vR))
    P("v_mul_f32 %s, 0x%x, %s" % (v(vC1), NLOG2E, v(vR)))
    P("v_mul_f32 %s, 0x%x, %s" % (v(vCS), LOG2E, v(vR)))
    P("v_mov_b32 %s, 1.0" % v(vMASKF))
    P("v_cndmask_b32 %s, %s, 0, %s" % (v(vMASKF), v(vMASKF), sHI))


def ln_addr_setup(P):
    l = v(vL)
    P("s_mul_i32 %s, %s, %d" % (s(sT1), s(sW), XST_W))
    P("s_add_u32 %s, %s, %d" % (s(sT1), s(sT1), L_XST))
    P("v_lshrrev_b32 v220, 3, %s" % l)
    P("v_and_b32 v221, 7, %s" % l)
    P("v_mul_u32_u24 v230, %d, v220" % XROW)
    P("v_lshl_add_u32 v230, v221, 4, v230")
    P("v_add_u32 v230, %s, v230" % s(sT1))
    P("s_lshl_b32 %s, %s, 7" % (s(sT2), s(sW)))
    P("s_add_u32 %s, %s, %d" % (s(sT2), s(sT2), L_RSTAT))
    P("v_lshlrev_b32 v231, 2, v220")
    P("v_add_u32 v231, %s, v231" % s(sT2))
    P("v_and_b32 v220, 31, %s" % l)
    P("v_lshrrev_b32 v221, 5, %s" % l)
    P("v_mul_u32_u24 v232, %d, v220" % XROW)
    P("v_lshl_add_u32 v232, v221, 4, v232")
    P("v_add_u32 v232, %s, v232" % s(sT1))
    P("v_lshlrev_b32 v233, 2, v220")
    P("v_add_u32 v233, %s, v233" % s(sT2))


def ffn_epilogue(acc, tmp, sbase, toff):
    Gr = [acc + i for i in range(8)]
    U = [acc + 8 + i for i in range(8)]
    T = [tmp + i for i in range(8)]
    o = []
    o += [I("v_mul_f32 %s, %s, %s" % (v(T[i]), v(vC1), v(Gr[i]))) for i in range(8)]
    o += [I("v_exp_f32 %s, %s" % (v(T[i]), v(T[i]))) for i in range(8)]
    o += [I("v_mul_f32 %s, %s, %s" % (v(Gr[i]), v(Gr[i]), v(U[i]))) for i in range(8)]
    o += [I("v_add_f32 %s, 1.0, %s" % (v(T[i]), v(T[i]))) for i in range(8)]
    o += [I("v_rcp_f32 %s, %s" % (v(T[i]), v(T[i]))) for i in range(8)]
    o += [I("v_mul_f32 %s, %s, %s" % (v(Gr[i]), v(Gr[i]), v(T[i]))) for i in range(8)]
    o += [I("v_cvt_pk_bf16_f32 %s, %s, %s" % (v(U[k]), v(Gr[2 * k]), v(Gr[2 * k + 1]))) for k in range(4)]
    o += [I("buffer_store_dwordx4 %s, %s, %s, %s offen offset:%d sc1" % (v(U[0], 4), v(vL16), srd(S_WS), s(sbase), toff), "hst")]
    return o


def softmax_pm(Pr, TA, tmp):
    mx, mn, t0, t1, sp, sn, sp2, sn2 = [tmp + i for i in range(8)]
    o = []
    A = o.append
    A(I("v_max3_f32 %s, %s, %s, %s" % (v(mx), v(Pr[0]), v(Pr[1]), v(Pr[2]))))
    A(I("v_min3_f32 %s, %s, %s, %s" % (v(mn), v(Pr[0]), v(Pr[1]), v(Pr[2]))))
    for k in range(3, 15, 2):
        A(I("v_max3_f32 %s, %s, %s, %s" % (v(mx), v(mx), v(Pr[k]), v(Pr[k + 1]))))
        A(I("v_min3_f32 %s, %s, %s, %s" % (v(mn), v(mn), v(Pr[k]), v(Pr[k + 1]))))
    A(I("v_max_f32 %s, %s, %s" % (v(mx), v(mx), v(Pr[15]))))
    A(I("v_min_f32 %s, %s, %s" % (v(mn), v(mn), v(Pr[15]))))
    A(I("v_mov_b32 %s, %s" % (v(t0), v(mx))))
    A(I("v_mov_b32 %s, %s" % (v(t1), v(mn))))
    A(I("s_nop 0"))
    A(I("v_permlane32_swap_b32 %s, %s" % (v(mx), v(t0))))
    A(I("v_permlane32_swap_b32 %s, %s" % (v(mn), v(t1))))
    A(I("v_max_f32 %s, %s, %s" % (v(mx), v(mx), v(t0))))
    A(I("v_min_f32 %s, %s, %s" % (v(mn), v(mn), v(t1))))
    A(I("v_mul_f32 %s, %s, %s" % (v(mx), v(mx), v(vCS))))
    A(I("v_mul_f32 %s, %s, %s" % (v(mn), v(mn), v(vCS))))
    for i in range(16):
        A(I("v_fma_f32 %s, %s, %s, -%s" % (v(TA[i]), v(Pr[i]), v(vCS), v(mx))))
        A(I("v_fma_f32 %s, %s, %s, %s" % (v(Pr[i]), v(Pr[i]), v(vC1), v(mn))))
    for i in range(16):
        A(I("v_exp_f32 %s, %s" % (v(TA[i]), v(TA[i]))))
        A(I("v_exp_f32 %s, %s" % (v(Pr[i]), v(Pr[i]))))
    A(I("v_add_f32 %s, %s, %s" % (v(sp), v(TA[0]), v(TA[1]))))
    A(I("v_add_f32 %s, %s, %s" % (v(sn), v(Pr[0]), v(Pr[1]))))
    A(I("v_add_f32 %s, %s, %s" % (v(sp2), v(TA[12]), v(TA[13]))))
    A(I("v_add_f32 %s, %s, %s" % (v(sn2), v(Pr[12]), v(Pr[13]))))
    for i in range(2, 12):
        A(I("v_add_f32 %s, %s, %s" % (v(sp), v(sp), v(TA[i]))))
        A(I("v_add_f32 %s, %s, %s" % (v(sn), v(sn), v(Pr[i]))))
        if i < 4:
            A(I("v_add_f32 %s, %s, %s" % (v(sp2), v(sp2), v(TA[12 + i]))))
            A(I("v_add_f32 %s, %s, %s" % (v(sn2), v(sn2), v(Pr[12 + i]))))
    A(I("v_fma_f32 %s, %s, %s, %s" % (v(sp), v(sp2), v(vMASKF), v(sp))))
    A(I("v_fma_f32 %s, %s, %s, %s" % (v(sn), v(sn2), v(vMASKF), v(sn))))
    A(I("v_mov_b32 %s, %s" % (v(t0), v(sp))))
    A(I("v_mov_b32 %s, %s" % (v(t1), v(sn))))
    A(I("s_nop 0"))
    A(I("v_permlane32_swap_b32 %s, %s" % (v(sp), v(t0))))
    A(I("v_permlane32_swap_b32 %s, %s" % (v(sn), v(t1))))
    A(I("v_add_f32 %s, %s, %s" % (v(sp), v(sp), v(t0))))
    A(I("v_add_f32 %s, %s, %s" % (v(sn), v(sn), v(t1))))
    A(I("v_rcp_f32 %s, %s" % (v(sp), v(sp))))
    A(I("v_rcp_f32 %s, %s" % (v(sn), v(sn))))
    A(I("s_nop 0"))
    A(I("v_mul_f32 %s, %s, %s" % (v(sp2), v(sp), v(vMASKF))))
    A(I("v_mul_f32 %s, %s, %s" % (v(sn2), v(sn), v(vMASKF))))
    for i in range(16):
        A(I("v_mul_f32 %s, %s, %s" % (v(TA[i]), v(TA[i]), v(sp if i < 12 else sp2))))
        A(I("v_mul_f32 %s, %s, %s" % (v(Pr[i]), v(Pr[i]), v(sn if i < 12 else sn2))))
    for k in range(8):
        A(I("v_cvt_pk_bf16_f32 %s, %s, %s" % (v(TA[k]), v(TA[2 * k]), v(TA[2 * k + 1]))))
        A(I("v_cvt_pk_bf16_f32 %s, %s, %s" % (v(Pr[k]), v(Pr[2 * k]), v(Pr[2 * k + 1]))))
    return o


def feature_logits(acc, pk, dst, head):
    o = []
    for k in range(8):
        o.append(I("v_cvt_pk_bf16_f32 %s, %s, %s" % (v(pk + k), v(acc + 2 * k), v(acc + 2 * k + 1))))
    for k in (6, 7):
        o.append(I("v_cndmask_b32 %s, %s, 0, %s" % (v(pk + k), v(pk + k), sHI)))
    o.append(I("v_mfma_f32_32x32x16_bf16 %s, %s, %s, 0" % (v(dst, 16), a(A_PHI + 8 * head, 4), v(pk, 4))))
    o.append(I("v_mfma_f32_32x32x16_bf16 %s, %s, %s, %s" % (v(dst, 16), a(A_PHI + 8 * head + 4, 4), v(pk + 4, 4), v(dst, 16))))
    return o


def exch_addr_setup():
    o = []
    l = v(vL)
    A = lambda t: o.append(I(t))
    A("v_and_b32 v220, 1, %s" % l)
    A("v_bfe_u32 v221, %s, 2, 2" % l)
    A("v_lshl_or_b32 v220, v221, 1, v220")
    A("v_bfe_u32 v221, %s, 1, 1" % l)
    A("v_lshl_or_b32 v220, v221, 3, v220")
    A("v_lshrrev_b32 v221, 5, %s" % l)
    A("v_xor_b32 v220, v220, v221")
    A("v_lshlrev_b32 v220, 3, v220")
    A("v_and_b32 v221, 31, %s" % l)
    A("v_lshl_add_u32 v220, v221, 7, v220")
    A("s_lshl_b32 %s, %s, 12" % (s(sP0), s(sW)))
    A("s_add_u32 %s, %s, %d" % (s(sP0), s(sP0), L_PHI))
    A("v_add_u32 v220, %s, v220" % s(sP0))
    for c in range(8):
        A("v_xor_b32 %s, %d, v220" % (v(vXA + c), 16 * c))
    A("v_bfe_u32 v220, %s, 2, 1" % l)
    A("v_bfe_u32 v221, %s, 3, 1" % l)
    A("v_lshl_or_b32 v220, v221, 3, v220")
    A("v_lshrrev_b32 v221, 5, %s" % l)
    A("v_lshl_or_b32 v220, v221, 2, v220")
    A("v_bfe_u32 v222, %s, 4, 1" % l)
    A("v_and_b32 v223, 3, %s" % l)
    A("v_lshl_or_b32 v222, v222, 2, v223")
    A("v_bfe_u32 v223, %s, 2, 2" % l)
    A("v_lshl_or_b32 v223, v221, 3, v223")
    A("v_lshlrev_b32 v223, 7, v223")
    A("s_and_b32 %s, %s, 1" % (s(sP0), s(sW)))
    A("s_lshl_b32 %s, %s, 3" % (s(sP0), s(sP0)))
    A("s_lshr_b32 %s, %s, 1" % (s(sP1_), s(sW)))
    A("s_lshl_b32 %s, %s, 3" % (s(sP2_), s(sP1_)))
    A("s_lshl_b32 %s, %s, 14" % (s(sP1_), s(sP1_)))
    A("s_add_u32 %s, %s, %d" % (s(sP1_), s(sP1_), L_PHI))
    for q in range(2):
        A("v_xor_b32 v224, %d, v220" % (2 * q))
        A("v_or_b32 v225, %s, v222" % s(sP0))
        A("v_xor_b32 v225, v225, v224")
        A("v_lshl_add_u32 v225, v225, 3, v223")
        A("v_add_u32 v225, %d, v225" % (512 * q))
        A("v_add_u32 %s, %s, v225" % (v(vKA + q), s(sP1_)))
        A("v_or_b32 v225, %s, v222" % s(sP2_))
        A("v_xor_b32 v225, v225, v224")
        A("v_lshl_add_u32 v225, v225, 3, v223")
        A("v_add_u32 %s, %d, v225" % (v(vKA + 2 + q), L_V + 512 * q))
    return o


def wphi_frags():
    o = []
    l = v(vL)
    A = lambda t: o.append(I(t))
    A("v_bfe_u32 v220, %s, 4, 1" % l)
    A("v_and_b32 v221, 3, %s" % l)
    A("v_lshl_or_b32 v220, v220, 2, v221")
    A("v_cmp_eq_u32 vcc, 7, v220")
    A("v_lshlrev_b32 v220, 3, v220")
    A("v_cndmask_b32 v220, v220, 0, vcc")
    A("v_lshrrev_b32 v221, 5, %s" % l)
    A("v_bfe_u32 v222, %s, 2, 2" % l)
    A("v_lshl_or_b32 v221, v221, 2, v222")
    A("v_mul_u32_u24 v221, 56, v221")
    A("v_add_u32 v220, v220, v221")
    A("v_add_u32 v220, %d, v220" % L_WPHI)
    for j in range(2):
        for sx in range(2):
            for q in range(2):
                off = j * 1568 + (16 * sx + 8 * q) * 56
                A("ds_read_b64_tr_b16 %s, v220 offset:%d" % (a(A_PHI + 8 * j + 4 * sx + 2 * q, 2), off))
    return o


def v_epilogue(accV):
    o = []
    for j in range(2):
        acc = accV[j]
        o += [I("v_mul_f32 %s, %s, %s" % (v(acc + i), v(acc + i), v(vR))) for i in range(16)]
        o += [I("v_cvt_pk_bf16_f32 %s, %s, %s" % (v(acc + k), v(acc + 2 * k), v(acc + 2 * k + 1))) for k in range(8)]
        o.append(I("v_mov_b32 v236, 0x3f80"))
        o.append(I("v_cndmask_b32 %s, %s, v236, %s" % (v(acc + 6), v(acc + 6), sHI)))
        o.append(I("v_cndmask_b32 %s, %s, 0, %s" % (v(acc + 7), v(acc + 7), sHI)))
        for rq in range(4):
            o.append(I("ds_write_b64 %s, %s offset:%d" % (v(vXA + 4 * j + rq), v(acc + 2 * rq, 2), L_V - L_PHI), "phiw"))
    return o


def k_epilogue(accK, dsts):
    o = []
    for j in range(2):
        pk = vT + 32 + 8 * j
        o += feature_logits(accK[j], pk, dsts[j], j)
    for j in range(2):
        Pr = [dsts[j] + i for i in range(16)]
        TA = [vT + i for i in range(16)]
        o += softmax_pm(Pr, TA, vT + 16)
        for rq in range(4):
            o.append(I("ds_write_b64 %s, %s offset:%d" % (v(vXA + rq), v(TA[2 * rq], 2), j * 16384), "phiw"))
            o.append(I("ds_write_b64 %s, %s offset:%d" % (v(vXA + 4 + rq), v(Pr[2 * rq], 2), j * 16384), "phiw"))
    return o


def kv_tile(dst):
    o = []
    bufA, bufB = A_KVF, A_KVF + 16
    for ks in range(8):
        ba, bb = bufA + 4 * (ks % 4), bufB + 4 * (ks % 4)
        for q in range(2):
            o.append(I("ds_read_b64_tr_b16 %s, %s offset:%d" % (a(ba + 2 * q, 2), v(vKA + q), ks * 2048)))
            o.append(I("ds_read_b64_tr_b16 %s, %s offset:%d" % (a(bb + 2 * q, 2), v(vKA + 2 + q), ks * 2048)))
        if ks >= 2:
            k2 = ks - 2
            o.append(I("v_mfma_f32_32x32x16_bf16 %s, %s, %s, %s" % (v(dst, 16), a(bufA + 4 * (k2 % 4), 4), a(bufB + 4 * (k2 % 4), 4), "0" if k2 == 0 else v(dst, 16))))
    for k2 in (6, 7):
        o.append(I("v_mfma_f32_32x32x16_bf16 %s, %s, %s, %s" % (v(dst, 16), a(bufA + 4 * (k2 % 4), 4), a(bufB + 4 * (k2 % 4), 4), v(dst, 16))))
    return o


def kv_atomics(src):
    return [I("buffer_atomic_add_f32 %s, %s, %s, %s offen offset:%d" % (v(src + r), v(vL4), srd(S_WS), s(sKV), r * 256), "kvat") for r in range(16)]


def raw(lst):
    for x in lst:
        x.meta["raw"] = True
    return lst


def check_flag(vreg, dbg_off_s):
    ok, lab = label("zok"), label("zspin")
    o = L("v_readfirstlane_b32 %s, %s" % (s(sT3), v(vreg)))
    o += L("s_nop 1")
    o += L("s_cmp_eq_u32 %s, 1" % s(sT3))
    o += L("s_cbranch_scc1 " + ok)
    o += raw(L("""s_mov_b32 %s, %d
%s:
buffer_load_dword %s, off, %s, %s sc1
s_waitcnt vmcnt(0)
v_readfirstlane_b32 %s, %s
s_nop 1
s_cmp_eq_u32 %s, 1
s_cbranch_scc1 %s
s_sub_u32 %s, %s, 1
s_cmp_eq_u32 %s, 0
s_cbranch_scc1 %s
s_sleep 1
s_branch %s""" % (s(sSPIN), OPT.spin_max, lab, v(vreg), srd(S_DBG), s(dbg_off_s), s(sT3), v(vreg), s(sT3), ok,
                  s(sSPIN), s(sSPIN), s(sSPIN), ok, lab)))
    o += L(ok + ":")
    return o


def only_wave0(insts):
    skip = label("nw0")
    return L("s_cmp_lg_u32 %s, 0" % s(sW)) + L("s_cbranch_scc1 " + skip) + raw(insts) + L(skip + ":")


def signal(counter_s):
    return only_wave0(L("v_mov_b32 v253, 1") + L("s_mov_b64 exec, 1") +
                      L("buffer_atomic_add v253, off, %s, %s sc1" % (srd(S_WS), s(counter_s))) + L("s_mov_b64 exec, -1"))


def zero_init(P, is_A):
    skip = label("nz")
    if is_A:
        P("s_lshl_b32 %s, %s, 1" % (s(sT1), s(sTY)))
        P("s_cmp_lg_u32 %s, %s" % (s(sT1), s(sM)))
        P("s_cbranch_scc1 " + skip)
        blk = L("v_mov_b32 v240, 0\nv_mov_b32 v241, 0\nv_mov_b32 v242, 0\nv_mov_b32 v243, 0")
        blk += L("s_lshl_b32 %s, %s, 14" % (s(sT1), s(sTY)))
        blk += L("s_add_u32 %s, %s, %s" % (s(sT1), s(sT1), s(sLW32)))
        blk += L("s_add_u32 %s, %s, %d" % (s(sT1), s(sT1), WS_KV))
        for i in range(4):
            blk += L("buffer_store_dwordx4 v[240:243], %s, %s, %s offen offset:%d sc1" % (v(vL16), srd(S_WS), s(sT1), i * 1024))
        blk += L("buffer_store_dword v240, off, %s, %s sc1" % (srd(S_WS), s(sCNTA)))
        P.ext(raw(blk))
    else:
        P("s_cmp_lg_u32 %s, 0" % s(sTY))
        P("s_cbranch_scc1 " + skip)
        blk = L("v_mov_b32 v240, 0")
        blk += L("buffer_store_dword v240, off, %s, %s sc1" % (srd(S_WS), s(sCNTB)))
        blk += L("s_add_u32 %s, %s, %d" % (s(sT1), s(sCNTB), CNT_O - CNT_H))
        blk += L("buffer_store_dword v240, off, %s, %s sc1" % (srd(S_WS), s(sT1)))
        P.ext(raw(blk))
    P(skip + ":")


def zero_flag_publish(is_A):
    skip = label("nzf")
    o = []
    if is_A:
        o += L("s_lshl_b32 %s, %s, 1" % (s(sT1), s(sTY)))
        o += L("s_cmp_lg_u32 %s, %s" % (s(sT1), s(sM)))
        o += L("s_cbranch_scc1 " + skip)
        off = sP0
    else:
        o += L("s_cmp_lg_u32 %s, 0" % s(sTY))
        o += L("s_cbranch_scc1 " + skip)
        off = sP1_
    o += L("s_cmp_lg_u32 %s, 0" % s(sW))
    o += L("s_cbranch_scc1 " + skip)
    o += raw(L("v_mov_b32 v240, 1") + L("buffer_store_dword v240, off, %s, %s sc1" % (srd(S_DBG), s(sZK if is_A else sZH))))
    o += L(skip + ":")
    return o


sZK, sZH = 86, 87
sCNTO = 88
sH0, sH1 = 89, 90
sR2 = 91
sCT = 92
sLW2 = 93


def common_roles(P):
    P("s_lshl_b32 %s, %s, 2" % (s(sZK), s(sTY)))
    P("s_lshl_b32 %s, %s, 2" % (s(sZH), s(sM)))
    P("s_add_u32 %s, %s, 32" % (s(sZH), s(sZH)))
    P("s_lshl_b32 %s, %s, 8" % (s(sCNTA), s(sTY)))
    P("s_add_u32 %s, %s, %d" % (s(sCNTA), s(sCNTA), CNT_KV))
    P("s_lshl_b32 %s, %s, 8" % (s(sCNTB), s(sM)))
    P("s_add_u32 %s, %s, %d" % (s(sCNTO), s(sCNTB), CNT_O))
    P("s_add_u32 %s, %s, %d" % (s(sCNTB), s(sCNTB), CNT_H))
    P("s_lshl_b32 %s, %s, 2" % (s(sT1), s(sM)))
    P("s_add_u32 %s, %s, %s" % (s(sT1), s(sT1), s(sW)))
    P("s_mul_i32 %s, %s, %d" % (s(sHB0), s(sT1), 112 * 1024))
    P("s_lshl_b32 %s, %s, 15" % (s(sOB), s(sT1)))
    P("s_add_u32 %s, %s, %d" % (s(sOB), s(sOB), WS_OB))


def setup_A(P):
    P("s_mul_i32 %s, %s, 112" % (s(sT1), s(sTY)))
    P("s_mul_i32 %s, %s, %d" % (s(sB4), s(sW), 32 * RS_QKV))
    P("s_add_u32 %s, %s, %s" % (s(sB4), s(sB4), s(sT1)))
    P("s_mul_i32 %s, %s, %d" % (s(sB5), s(sW), 16 * RS_QKV))
    P("s_add_u32 %s, %s, %s" % (s(sB5), s(sB5), s(sT1)))
    P("s_lshl_b32 %s, %s, 7" % (s(sT1), s(sTY)))
    P("s_add_u32 %s, %s, 2560" % (s(sT1), s(sT1)))
    P("s_mul_i32 %s, %s, %d" % (s(sB2), s(sW), 16 * RS_FF))
    P("s_add_u32 %s, %s, %s" % (s(sB2), s(sB2), s(sT1)))
    P("s_lshl_b32 %s, %s, 12" % (s(sT1), s(sTY)))
    P("s_add_u32 %s, %s, %s" % (s(sHB0), s(sHB0), s(sT1)))
    P("s_add_u32 %s, %s, %d" % (s(sHB0), s(sHB0), 80 * 1024 + WS_HB))
    P("s_lshl_b32 %s, %s, 14" % (s(sKV), s(sTY)))
    P("s_add_u32 %s, %s, %s" % (s(sKV), s(sKV), s(sLW32)))
    P("s_add_u32 %s, %s, %d" % (s(sKV), s(sKV), WS_KV))
    P("s_lshl_b32 %s, %s, 12" % (s(sT1), s(sTY)))
    P("s_add_u32 %s, %s, %s" % (s(sOB), s(sOB), s(sT1)))


def setup_F(P):
    P("s_mul_i32 %s, %s, 320" % (s(sT1), s(sTY)))
    P("s_and_b32 %s, %s, 1" % (s(sT2), s(sTY)))
    P("s_lshl_b32 %s, %s, 6" % (s(sT3), s(sT2)))
    P("s_add_u32 %s, %s, %s" % (s(sP0), s(sT1), s(sT3)))
    P("s_add_u32 %s, %s, 128" % (s(sP1_), s(sP0)))
    P("s_xor_b32 %s, %s, 1" % (s(sT2), s(sT2)))
    P("s_lshl_b32 %s, %s, 8" % (s(sT2), s(sT2)))
    P("s_add_u32 %s, %s, %s" % (s(sP2_), s(sT1), s(sT2)))
    P("s_mul_i32 %s, %s, %d" % (s(sT1), s(sW), 16 * RS_FF))
    P("s_add_u32 %s, %s, %s" % (s(sB2), s(sT1), s(sP0)))
    P("s_add_u32 %s, %s, %s" % (s(sB3), s(sT1), s(sP1_)))
    P("s_add_u32 %s, %s, %s" % (s(sB5), s(sT1), s(sP2_)))
    P("s_lshl_b32 %s, %s, 1" % (s(sT1), s(sT1)))
    P("s_add_u32 %s, %s, %s" % (s(sB4), s(sT1), s(sP2_)))
    P("s_add_u32 %s, %s, %d" % (s(sHB0), s(sHB0), WS_HB))
    P("s_lshl_b32 %s, %s, 5" % (s(sT1), s(sP1_)))
    P("s_add_u32 %s, %s, %s" % (s(sHB1), s(sHB0), s(sT1)))
    P("s_lshl_b32 %s, %s, 5" % (s(sT1), s(sP2_)))
    P("s_add_u32 %s, %s, %s" % (s(sHB2), s(sHB0), s(sT1)))
    P("s_lshl_b32 %s, %s, 5" % (s(sT1), s(sP0)))
    P("s_add_u32 %s, %s, %s" % (s(sHB0), s(sHB0), s(sT1)))


def wphi_dma(P):
    P("s_mul_i32 %s, %s, 3136" % (s(sT1), s(sTY)))
    P("s_add_u32 %s, %s, %s" % (s(sT1), s(sT1), s(sLW8)))
    P.ext(dma(S_PHI, vL16, sT1, 0, sLW8, L_WPHI, "wphi"))


def q_work(P, accQ):
    spin_until(P, "buffer_load_dword v254, off, %s, %s sc1" % (srd(S_WS), s(sCNTA)), 16)
    KV = vT
    for r in range(16):
        P("buffer_load_dword %s, %s, %s, %s offen offset:%d sc1" % (v(KV + r), v(vL4), srd(S_WS), s(sKV), r * 256), tag="kvl")
    P("s_lshl_b32 %s, %s, 11" % (s(sT1), s(sW)))
    P("s_add_u32 %s, %s, %d" % (s(sT1), s(sT1), L_KVF))
    P("v_add_u32 v237, %s, %s" % (s(sT1), v(vL16)))
    for k in range(8):
        P("v_cvt_pk_bf16_f32 %s, %s, %s" % (v(KV + k), v(KV + 2 * k), v(KV + 2 * k + 1)))
    P("ds_write_b128 v237, %s" % v(KV, 4))
    P("ds_write_b128 v237, %s offset:1024" % v(KV + 4, 4))
    P("@waitlgkm_all")
    P("s_barrier")
    P("v_add_u32 v237, %d, %s" % (L_KVF, v(vL16)))
    for n in range(8):
        P("ds_read_b128 %s, v237 offset:%d" % (a(A_KVF + 4 * n, 4), n * 1024))
    for j in range(2):
        pk = vT + 32
        lg = ACC_B + 16 * j
        P.ext(feature_logits(accQ[j], pk, lg, j))
    for j in range(2):
        lg = ACC_B + 16 * j
        Pr = [lg + i for i in range(16)]
        TA = [vT + i for i in range(16)]
        P.ext(softmax_pm(Pr, TA, vT + 16))
        num = ACC_B + 32 + 16 * j
        n = 0
        for ft, base in ((0, TA[0]), (1, Pr[0])):
            for sx in range(2):
                P("v_mfma_f32_32x32x16_bf16 %s, %s, %s, %s" % (v(num, 16), a(A_KVF + 16 * j + 8 * ft + 4 * sx, 4), v(base + 4 * sx, 4), "0" if n == 0 else v(num, 16)))
                n += 1
    for j in range(2):
        num = ACC_B + 32 + 16 * j
        t0, t1 = vT + 16, vT + 17
        P("v_mov_b32 %s, %s" % (v(t0), v(num + 12)))
        P("v_mov_b32 %s, %s" % (v(t1), v(num + 12)))
        P("s_nop 0")
        P("v_permlane32_swap_b32 %s, %s" % (v(t0), v(t1)))
        P("v_add_f32 %s, 0x358637bd, %s" % (v(t1), v(t1)))
        P("v_rcp_f32 %s, %s" % (v(t1), v(t1)))
        P("s_nop 0")
        for i in range(16):
            P("v_mul_f32 %s, %s, %s" % (v(num + i), v(num + i), v(t1)))
        for k in range(8):
            P("v_cvt_pk_bf16_f32 %s, %s, %s" % (v(num + k), v(num + 2 * k), v(num + 2 * k + 1)))
        for k in (6, 7):
            P("v_cndmask_b32 %s, %s, 0, %s" % (v(num + k), v(num + k), sHI))
        for sx in range(2):
            P("buffer_store_dwordx4 %s, %s, %s, %s offen offset:%d sc1" % (v(num + 4 * sx, 4), v(vL16), srd(S_WS), s(sOB), (2 * j + sx) * 1024), tag="ost")
    P("@waitvm ost")
    P("s_barrier")
    P.ext(signal(sCNTO))


def program_A(P):
    gK = Group("k", [0, 1], [ACC_A, ACC_A + 16], vTA)
    gV = Group("v", [0, 1], [ACC_A + 32, ACC_A + 48], vTA)
    gF = Group("ffA", [0, 1, 2, 3], [ACC_B + 16 * t for t in range(4)], vTA + 8)
    gQ = Group("q", [0, 1], [ACC_A, ACC_A + 16], vTA)
    groups = [gK, gV, gF, gQ]
    common_roles(P)
    setup_A(P)
    zero_init(P, True)
    wphi_dma(P)
    for ch in group_chunks(groups)[:NSLOT]:
        for g in chunk_dma(ch):
            P.ext(g)
    code_prefetch(P)
    ln_addr_setup(P)
    tile_addr_setup(P, "att", vTA)
    tile_addr_setup(P, "ff", vTA + 8)
    stamp(P, 0)
    layernorm(P)
    stamp(P, 1)
    f_k = G(k_epilogue([ACC_A, ACC_A + 16], [ACC_B, ACC_B + 16]))
    setup = G(exch_addr_setup())
    flagload = [L("buffer_load_dword %s, off, %s, %s sc1" % (v(vFZ1), srd(S_DBG), s(sZK))),
                L("buffer_load_dword %s, off, %s, %s sc1" % (v(vFZ0), srd(S_DBG), s(sZH)))]
    f_v = G(v_epilogue([ACC_A + 32, ACC_A + 48]))
    f_kv = G(kv_tile(ACC_A + 32)) + [check_flag(vFZ1, sZK)] + G(kv_atomics(ACC_A + 32))
    f_ffn = []
    for t in range(4):
        f_ffn += G(ffn_epilogue(ACC_B + 16 * t, vT + 24, sHB0, t * 1024))
    nch_k, nch_v = 4, 4
    cF = nch_k + nch_v
    fillers = [(0, 4, 56, G(wphi_frags()) + setup),
               (1, 2, 56, f_k + flagload),
               (2, 2, 26, f_v),
               (2, 34, 70, f_kv),
               (3, 2, 54, f_ffn)]
    bar_pre = {cF + 2: L("@waitlgkm phiw"), cF + 8: L("@waitvm kvat")}
    bar_post = {0: zero_flag_publish(True), cF + 8: signal(sCNTA)}
    chunks, pre, body = build_p1_stream(groups, fillers, bar_pre, bar_post)
    P("@waitvm wphi")
    P.ext(pre)
    P.ext(body)
    stamp(P, 2)
    P("@waitvm hst")
    P("s_barrier")
    P.ext(check_flag(vFZ0, sZH))
    P.ext(signal(sCNTB))
    stamp(P, 3)
    q_work(P, [ACC_A, ACC_A + 16])
    stamp(P, 4)
    if OPT.stamps:
        go = label("go")
        P("s_cmp_lg_u32 %s, 0" % s(sGI))
        P("s_cbranch_scc1 " + go)
        stamp(P, 9, final=True)
        PEND[0] = 4
        P("s_branch L_exit")
        P(go + ":")
    P("s_cmp_eq_u32 %s, 0" % s(sGI))
    P("s_cbranch_scc1 L_exit")
    P("s_branch L_phase2")


def program_F(P):
    gU0 = Group("ffA", [0, 1, 2, 3], [ACC_A + 16 * t for t in range(4)], vTA)
    gU1 = Group("ffB", [0, 1, 2, 3], [ACC_B + 16 * t for t in range(4)], vTA)
    gH = Group("h", [0, 1], [ACC_A, ACC_A + 16], vTA + 8)
    groups = [gU0, gU1, gH]
    common_roles(P)
    setup_F(P)
    zero_init(P, False)
    for ch in group_chunks(groups)[:NSLOT]:
        for g in chunk_dma(ch):
            P.ext(g)
    code_prefetch(P)
    ln_addr_setup(P)
    tile_addr_setup(P, "ff", vTA)
    tile_addr_setup(P, "h", vTA + 8)
    stamp(P, 0)
    layernorm(P)
    stamp(P, 1)
    f0, f1 = [], []
    for t in range(4):
        f0 += G(ffn_epilogue(ACC_A + 16 * t, vT + 24, sHB0, t * 1024))
        f1 += G(ffn_epilogue(ACC_B + 16 * t, vT + 24, sHB1, t * 1024))
    flagload = [L("buffer_load_dword %s, off, %s, %s sc1" % (v(vFZ0), srd(S_DBG), s(sZH)))]
    fillers = [(1, 2, 110, f0 + flagload), (2, 2, 54, f1)]
    chunks, pre, body = build_p1_stream(groups, fillers, {}, {0: zero_flag_publish(False)})
    P.ext(pre)
    P.ext(body)
    stamp(P, 2)
    for t in range(2):
        P.ext(ffn_epilogue(ACC_A + 16 * t, vT + 24 + 8 * t, sHB2, t * 1024))
    P("@waitvm hst")
    P("s_barrier")
    P.ext(check_flag(vFZ0, sZH))
    P.ext(signal(sCNTB))
    stamp(P, 3)
    stamp(P, 4)


P2_ACC = 16
P2_S = 80
P2_H = 96
vD2, vDX, vWA0, vWA1, vWO, vEXW, vEXR, vXD, vOR, vOS = 2, 3, 4, 5, 6, 224, 227, 228, 232, 233


def phase2(P):
    l = v(vL)
    P("L_phase2:")
    P("@flush")
    P("s_waitcnt vmcnt(0) lgkmcnt(0)")
    P("s_barrier")
    P("s_sub_u32 %s, %s, 1" % (s(sCT), s(sGI)))
    P("s_lshl_b32 %s, %s, 7" % (s(sCT), s(sCT)))
    P("s_lshl_b32 %s, %s, 7" % (s(sR2), s(sM)))
    P("s_lshl_b32 %s, %s, 6" % (s(sT1), s(sGH)))
    P("s_add_u32 %s, %s, %s" % (s(sR2), s(sR2), s(sT1)))
    P("v_lshrrev_b32 v220, 3, %s" % l)
    P("v_and_b32 v221, 7, %s" % l)
    P("v_mul_u32_u24 v222, %d, v220" % RS_W2)
    P("v_bfe_u32 v223, v220, 1, 1")
    P("v_lshlrev_b32 v223, 2, v223")
    P("v_xor_b32 v223, v223, v221")
    P("v_lshl_add_u32 %s, v223, 4, v222" % v(vD2))
    P("v_xor_b32 v223, v220, v221")
    P("v_lshl_add_u32 %s, v223, 4, v222" % v(vDX))
    P("v_lshl_add_u32 %s, v221, 4, v222" % v(vOS))
    P("v_lshlrev_b32 v224, 7, v220")
    P("v_lshl_add_u32 v224, v223, 4, v224")
    P("s_add_u32 %s, %s, %d" % (s(sT1), s(sLW16), L_OUTST))
    P("v_add_u32 %s, %s, v224" % (v(vOR), s(sT1)))
    P("s_mul_i32 %s, %s, %d" % (s(sLW2), s(sW), W2STEPS * 2048))
    P("s_add_u32 %s, %s, %d" % (s(sLW2), s(sLW2), L_W2ST))
    P("s_mul_i32 %s, %s, %d" % (s(sB0), s(sW), 28 * 16 * RS_W2))
    P("s_add_u32 %s, %s, %s" % (s(sB0), s(sB0), s(sCT)))
    P("s_mul_i32 %s, %s, %d" % (s(sB1), s(sW), 8 * RS_W2))
    P("s_add_u32 %s, %s, %s" % (s(sB1), s(sB1), s(sCT)))

    def w2_dma(jj):
        return [dma(S_W2, vD2, sB0, (16 * jj + 8 * i) * RS_W2, sLW2, (jj % W2STEPS) * 2048 + 1024 * i, "w2_%d" % jj) for i in range(2)]
    for jj in range(W2STEPS):
        for g in w2_dma(jj):
            P.ext(g)
    for u in range(14):
        P.ext(dma(S_WO, vD2, sB1, 32 * u * RS_W2, sLW8, L_WO + 4096 * u, "wo"))
    P("s_add_u32 %s, %s, %d" % (s(sT1), s(sCT), 448 * RS_W2))
    P.ext(dma(S_WO, vD2, sT1, 0, None, L_WO + 57344, "wo"))
    P("s_lshl_b32 %s, %s, 4" % (s(sT1), s(sW)))
    P("s_add_u32 %s, %s, %s" % (s(sT1), s(sT1), s(sR2)))
    P("s_mul_i32 %s, %s, %d" % (s(sB2), s(sT1), RS_X))
    P("s_add_u32 %s, %s, %s" % (s(sB2), s(sB2), s(sCT)))
    for i in range(2):
        P.ext(dma(S_X, vDX, sB2, 8 * i * RS_X, sLW16, L_XT + 1024 * i, "xt"))
    P("v_lshrrev_b32 v220, 5, %s" % l)
    P("v_bfe_u32 v221, %s, 2, 2" % l)
    P("v_lshl_or_b32 v220, v220, 2, v221")
    P("v_lshlrev_b32 v220, 7, v220")
    P("v_bfe_u32 v221, %s, 4, 1" % l)
    P("v_lshl_add_u32 v220, v221, 5, v220")
    P("v_and_b32 v221, 3, %s" % l)
    P("v_lshl_add_u32 v220, v221, 3, v220")
    P("v_bfe_u32 v221, %s, 3, 1" % l)
    P("s_and_b32 %s, %s, 1" % (s(sT1), s(sW)))
    P("v_xor_b32 v221, %s, v221" % s(sT1))
    P("v_lshl_add_u32 %s, v221, 6, v220" % v(vWO))
    P("v_add_u32 %s, %s, %s" % (v(vWA0), s(sLW2), v(vWO)))
    P("v_xor_b32 v221, 1, v221")
    P("v_lshl_add_u32 v222, v221, 6, v220")
    P("v_add_u32 %s, %s, v222" % (v(vWA1), s(sLW2)))
    P("s_lshr_b32 %s, %s, 1" % (s(sT1), s(sW)))
    P("s_lshl_b32 %s, %s, 2" % (s(sT2), s(sM)))
    P("s_lshl_b32 %s, %s, 1" % (s(sT3), s(sGH)))
    P("s_add_u32 %s, %s, %s" % (s(sT2), s(sT2), s(sT3)))
    P("s_add_u32 %s, %s, %s" % (s(sT3), s(sT2), s(sT1)))
    P("s_mul_i32 %s, %s, %d" % (s(sH0), s(sT3), 112 * 1024))
    P("s_lshl_b32 %s, %s, 15" % (s(sOB), s(sT3)))
    P("s_add_u32 %s, %s, %d" % (s(sOB), s(sOB), WS_OB))
    P("s_xor_b32 %s, %s, 1" % (s(sT1), s(sT1)))
    P("s_add_u32 %s, %s, %s" % (s(sT3), s(sT2), s(sT1)))
    P("s_mul_i32 %s, %s, %d" % (s(sH1), s(sT3), 112 * 1024))
    P("s_mul_i32 %s, %s, %d" % (s(sT1), s(sW), 28 * 1024))
    P("s_add_u32 %s, %s, %s" % (s(sH0), s(sH0), s(sT1)))
    P("s_add_u32 %s, %s, %s" % (s(sH1), s(sH1), s(sT1)))
    if WS_HB:
        P("s_add_u32 %s, %s, %d" % (s(sH0), s(sH0), WS_HB))
        P("s_add_u32 %s, %s, %d" % (s(sH1), s(sH1), WS_HB))
    for d in range(1, 4):
        P("s_xor_b32 %s, %s, %d" % (s(sT1), s(sW), d))
        P("s_mul_i32 %s, %s, %d" % (s(sT1), s(sT1), 3 * 4096))
        P("s_add_u32 %s, %s, %d" % (s(sT1), s(sT1), L_EX + (d - 1) * 4096))
        P("v_add_u32 %s, %s, %s" % (v(vEXW + d - 1), s(sT1), v(vL16)))
    P("s_mul_i32 %s, %s, %d" % (s(sT1), s(sW), 3 * 4096))
    P("s_add_u32 %s, %s, %d" % (s(sT1), s(sT1), L_EX))
    P("v_add_u32 %s, %s, %s" % (v(vEXR), s(sT1), v(vL16)))
    P("v_and_b32 v220, 31, %s" % l)
    P("s_lshr_b32 %s, %s, 1" % (s(sT1), s(sW)))
    P("s_lshl_b32 %s, %s, 5" % (s(sT1), s(sT1)))
    P("v_add_u32 v221, %s, v220" % s(sT1))
    P("v_lshlrev_b32 v222, 7, v221")
    P("s_and_b32 %s, %s, 1" % (s(sT2), s(sW)))
    P("s_lshl_b32 %s, %s, 2" % (s(sT2), s(sT2)))
    P("v_and_b32 v223, 7, v220")
    P("v_xor_b32 v223, %s, v223" % s(sT2))
    P("v_lshl_add_u32 v222, v223, 4, v222")
    P("v_lshrrev_b32 v223, 5, %s" % l)
    P("v_lshl_add_u32 v222, v223, 3, v222")
    P("v_add_u32 v222, %d, v222" % L_OUTST)
    for rq in range(4):
        P("v_xor_b32 %s, %d, v222" % (v(vXD + rq), 16 * rq))
    P("s_lshl_b32 %s, %s, 8" % (s(sT1), s(sGH)))
    P("s_add_u32 %s, %s, %d" % (s(sT1), s(sT1), L_RSTAT))
    P("v_lshlrev_b32 v221, 2, v221")
    P("v_add_u32 v221, %s, v221" % s(sT1))
    P("ds_read_b32 %s, v221" % v(vR))
    P("v_mul_f32 %s, %s, %s" % (v(vR), v(vR), v(vR)))
    for jj in range(28):
        P("@waitvm w2_%d" % jj)
        for c, reg in ((0, vWA0), (1, vWA1)):
            for q in range(2):
                P("ds_read_b64_tr_b16 %s, %s offset:%d" % (a(8 * jj + 4 * c + 2 * q, 2), v(reg), (jj % W2STEPS) * 2048 + 1024 * q), tag="w2r_%d" % jj)
        if jj >= 1 and jj - 1 + W2STEPS < 28:
            P("@waitlgkm w2r_%d" % (jj - 1))
            for g in w2_dma(jj - 1 + W2STEPS):
                P.ext(g)
    P("@waitlgkm_all")
    P("@waitvm wo xt")
    P("s_barrier")
    stamp(P, 5)
    spin_until(P, "buffer_load_dword v254, off, %s, %s sc1" % (srd(S_WS), s(sCNTB)), 16)
    stamp(P, 6)
    items = [(jj, aa) for jj in range(28) for aa in range(2)]
    NB = 32

    def hload(n):
        jj, aa = items[n]
        sb = sH0 if aa == 0 else sH1
        o = []
        if jj % 4 == 0 and jj > 0:
            o += L("s_add_u32 %s, %s, 4096" % (s(sb), s(sb)))
        o += [I("buffer_load_dwordx4 %s, %s, %s, %s offen offset:%d sc1" % (v(P2_H + 4 * (n % NB), 4), v(vL16), srd(S_WS), s(sb), (jj % 4) * 1024), "h")]
        return o
    for n in range(NB):
        P.ext(hload(n))
    for n, (jj, aa) in enumerate(items):
        for c in range(2):
            acc = P2_ACC + 16 * (2 * aa + c)
            P("v_mfma_f32_32x32x16_bf16 %s, %s, %s, %s" % (v(acc, 16), a(8 * jj + 4 * c, 4), v(P2_H + 4 * (n % NB), 4), "0" if jj == 0 else v(acc, 16)))
        if n + NB < len(items):
            P.ext(hload(n + NB))
    stamp(P, 7)
    spin_until(P, "buffer_load_dword v254, off, %s, %s sc1" % (srd(S_WS), s(sCNTO)), 8)
    for kk in range(32):
        if kk % 4 == 0 and kk > 0:
            P("s_add_u32 %s, %s, 4096" % (s(sOB), s(sOB)))
        P("buffer_load_dwordx4 %s, %s, %s, %s offen offset:%d sc1" % (v(P2_H + 4 * kk, 4), v(vL16), srd(S_WS), s(sOB), (kk % 4) * 1024), tag="o")
    for d in range(1, 4):
        acc = P2_ACC + 16 * d
        for q in range(4):
            P("ds_write_b128 %s, %s offset:%d" % (v(vEXW + d - 1), v(acc + 4 * q, 4), q * 1024))
    P("@waitlgkm_all")
    P("s_barrier")
    for d in range(1, 4):
        acc = P2_ACC + 16 * d
        for q in range(4):
            P("ds_read_b128 %s, %s offset:%d" % (v(acc + 4 * q, 4), v(vEXR), (d - 1) * 4096 + q * 1024))
    def wo_reads(kk):
        h, sx = kk // 2, kk % 2
        buf = 4 * (kk % 8)
        return [I("ds_read_b64_tr_b16 %s, %s offset:%d" % (a(buf + 2 * q, 2), v(vWO), (28 * h + 16 * sx + 8 * q) * 128)) for q in range(2)]
    for kk in range(4):
        P.ext(wo_reads(kk))
    adds = []
    for d in range(1, 4):
        for i in range(16):
            adds.append(I("v_add_f32 %s, %s, %s" % (v(P2_ACC + i), v(P2_ACC + i), v(P2_ACC + 16 * d + i))))
    for kk in range(32):
        P("v_mfma_f32_32x32x16_bf16 %s, %s, %s, %s" % (v(P2_S, 16), a(4 * (kk % 8), 4), v(P2_H + 4 * kk, 4), "0" if kk == 0 else v(P2_S, 16)))
        if kk + 4 < 32:
            P.ext(wo_reads(kk + 4))
        if kk >= 4:
            P.ext(adds[:2])
            adds = adds[2:]
    P.ext(adds)
    stamp(P, 8)
    X = P2_H
    for rq in range(4):
        P("ds_read_b64 %s, %s offset:%d" % (v(X + 2 * rq, 2), v(vXD + rq), L_XT - L_OUTST))
    B, S_, T = P2_ACC, P2_S, P2_H + 16
    for i in range(16):
        P("v_mul_f32 %s, %s, %s" % (v(B + i), v(B + i), v(vR)))
    for i in range(16):
        P("v_mul_f32 %s, 0x%x, %s" % (v(T + i), NLOG2E, v(B + i)))
    for i in range(16):
        P("v_exp_f32 %s, %s" % (v(T + i), v(T + i)))
    for i in range(16):
        P("v_add_f32 %s, 1.0, %s" % (v(T + i), v(T + i)))
    for i in range(16):
        P("v_rcp_f32 %s, %s" % (v(T + i), v(T + i)))
    for i in range(16):
        P("v_mul_f32 %s, %s, %s" % (v(B + i), v(B + i), v(S_ + i)))
    U = T + 16
    for k in range(8):
        P("v_lshlrev_b32 %s, 16, %s" % (v(U + 2 * k), v(X + k)))
        P("v_and_b32 %s, 0xffff0000, %s" % (v(U + 2 * k + 1), v(X + k)))
    for i in range(16):
        P("v_fma_f32 %s, %s, %s, %s" % (v(B + i), v(B + i), v(T + i), v(U + i)))
    for k in range(8):
        P("v_cvt_pk_bf16_f32 %s, %s, %s" % (v(B + k), v(B + 2 * k), v(B + 2 * k + 1)))
    for rq in range(4):
        P("ds_write_b64 %s, %s" % (v(vXD + rq), v(B + 2 * rq, 2)))
    P("@waitlgkm_all")
    P("s_barrier")
    for i in range(2):
        P("ds_read_b128 %s, %s offset:%d" % (v(T + 4 * i, 4), v(vOR), 1024 * i))
    for i in range(2):
        if i:
            P("s_add_u32 %s, %s, %d" % (s(sB2), s(sB2), 8 * RS_X))
        P("buffer_store_dwordx4 %s, %s, %s, %s offen" % (v(T + 4 * i, 4), v(vOS), srd(S_OUT), s(sB2)))
    stamp(P, 9, final=True)


def finish(P):
    ins = resolve_waits(P.ins)
    ins, nn = pad_hazards(ins)
    return ins, nn


def build():
    uid[0] = 0
    head = Prog()
    prologue(head)
    head("s_cmp_ge_u32 %s, 4" % s(sGI))
    head("s_cbranch_scc1 L_typeF")
    pend = PEND[0]
    PA = Prog(); PA.ext(head.ins); program_A(PA)
    PEND[0] = pend
    PF = Prog(); PF.ext(head.ins); program_F(PF)
    PEND[0] = 4
    insA, nA = finish(PA)
    insF, nF = finish(PF)
    def cut(ins):
        for k, x in enumerate(ins):
            if x.text == "s_cbranch_scc1 L_typeF":
                return k + 1
    ka, kf = cut(insA), cut(insF)
    assert [x.text for x in insA[:ka]] == [x.text for x in insF[:kf]]
    P2 = Prog()
    if OPT.stop_after == "p1":
        P2("L_phase2:")
        P2("s_waitcnt vmcnt(0) lgkmcnt(0)")
        stamp(P2, 9, final=True)
    else:
        phase2(P2)
    ins2, n2 = finish(P2)
    text = render(insA) + "\nL_typeF:\n" + render(insF[kf:]) + "\n" + render(ins2) + "\nL_exit:\n    s_endpgm\n"
    stats = dict(nA=len(insA), nF=len(insF), n2=len(ins2), nopA=nA, nopF=nF, nop2=n2)
    return text, stats


HEADER = """; Kernarg layout for this problem (88 bytes, ptrs only, base s[0:1]):
; @launch grid=(256,1,1) block=(256,1,1) lds=%d
.amdgcn_target "amdgcn-amd-amdhsa--gfx950"
.text
.globl %s
.p2align 8
.type %s,@function
%s:
"""
FOOTER = """
.section .rodata,"a"
.p2align 6
.amdhsa_kernel %s
  .amdhsa_next_free_vgpr 512
  .amdhsa_next_free_sgpr 102
  .amdhsa_accum_offset 256
  .amdhsa_group_segment_fixed_size 0
  .amdhsa_kernarg_size 88
  .amdhsa_user_sgpr_count 2
  .amdhsa_user_sgpr_kernarg_segment_ptr 1
  .amdhsa_system_sgpr_workgroup_id_x 1
.end_amdhsa_kernel
"""


def generate(path):
    text, stats = build()
    out = HEADER % (LDS_SIZE, NAME, NAME, NAME) + text + FOOTER % NAME
    open(path, "w").write(out)
    return stats


if __name__ == "__main__":
    import argparse
    ap = argparse.ArgumentParser()
    ap.add_argument("-o", default="out.s")
    ap.add_argument("--stamps", action="store_true")
    ap.add_argument("--stop", default=None)
    ap.add_argument("--hot", action="store_true")
    ap.add_argument("--exp", default="")
    a_ = ap.parse_args()
    OPT.stamps = a_.stamps
    OPT.stop_after = a_.stop
    OPT.hot_w = a_.hot
    for e in a_.exp.split(","):
        if e:
            setattr(OPT, e, True)
    print(generate(a_.o))
```

```python
import sys, os
sys.path.insert(0, os.path.dirname(os.path.abspath(__file__)))
from asmlib import I, Inst, resolve_waits, pad_hazards, render

NAME = "recurrent_scan__linear_kernel_hedgehog__glu_gated_swiglu__prompt_kernel"

class Opt:
    stamps = False
    stop_after = None
    spin_max = 1 << 17
    prefetch_code = True
    cyc = False
    l2pf = True
    nol2pf = False
    chunkst = False
    cs0 = 1
    pair_wait = True
    dma_gap = 3
    no_dma = False
    no_bar = False
    no_reads = False
    no_fill = False
    hot_w = False
OPT = Opt()

LOG2E = 0x3FB8AA3B
NLOG2E = 0xBFB8AA3B
RS_X, RS_QKV, RS_FF, RS_W2 = 896, 2688, 3584, 896
WS_HB = 0
WS_OB = WS_HB + 16 * 4 * 112 * 1024
WS_KV = WS_OB + 16 * 4 * 32 * 1024
WS_CNT = WS_KV + 16 * 8192
CNT_KV, CNT_H, CNT_O, CNT_E = WS_CNT, WS_CNT + 2048, WS_CNT + 2048 + 4096, WS_CNT + 2048 + 8192
WS_TS = WS_CNT + 16384
WS_SIZE = WS_TS + 256 * 4 * 128
SLOT = 16384
NSLOT = 5
L_XST = 81920
XST_W = 16896
XROW = 528
L_PHI = 81920
L_V = L_PHI + 32768
L_WPHI = 149504
L_RSTAT = 163328
L_R2 = 81920
L_WO = 81920
L_KVF = 140288
L_XT = 148480
L_EX = 0
L_OUTST = 140288
LDS_SIZE = 163840

S_X, S_QKV, S_PHI, S_WO, S_W1, S_W3, S_W2, S_OUT, S_DBG, S_WS = 4, 8, 12, 16, 20, 24, 28, 32, 36, 40
def srd(b): return "s[%d:%d]" % (b, b + 3)
sW, sM, sGI, sGH, sTY = 44, 45, 46, 47, 48
sT0, sT1, sT2, sT3 = 49, 50, 51, 52
sONES, sE0, sE1 = 53, 54, 55
sLW16, sLW32, sLW8 = 56, 57, 58
sB0, sB1, sB2, sB3, sB4, sB5 = 62, 63, 64, 65, 66, 67
sHB0, sHB1, sHB2 = 68, 69, 70
sSOFF = 71
sKV, sOB, sCNTA, sCNTB = 72, 73, 74, 75
sSPIN = 91
sHI = "s[60:61]"
sTS = 78
sTSB = 77
sP0, sP1_, sP2_, sP3 = 80, 81, 82, 83
sRB = 94
sXO = 98
sD29 = "s[80:81]"

vTID, vL = 0, 1
ACC_A, ACC_B = 16, 80
def XR(p, j): return 16 + (j * 4 + p) * 4
vT = 144
vDQ, vDG, vDU, vDG64, vDU64 = 2, 3, 4, 5, 6
vR, vC1, vCS, vMASKF = 7, 8, 9, 10
vL16 = 11
vL4 = 12
vFZ0, vFZ1 = 13, 14
vTA = 192
vXA = 208
vKA = 216
vXW = 132
vLW, vLRW, vLF, vLRR, vLT, vXO = 128, 129, 130, 131, 136, 141
vZ = 137
vVF, vONE = 232, 234
vMISC = 220
A_X = 0
A_WB = 112
A_PHI = 144
A_KVF = 160


def v(i, n=1): return "v%d" % i if n == 1 else "v[%d:%d]" % (i, i + n - 1)
def a(i, n=1): return "a%d" % i if n == 1 else "a[%d:%d]" % (i, i + n - 1)
def s(i, n=1): return "s%d" % i if n == 1 else "s[%d:%d]" % (i, i + n - 1)


class Prog:
    def __init__(self):
        self.ins = []
    def __call__(self, text, tag=None, **meta):
        for line in text.strip().split("\n"):
            line = line.strip()
            if line:
                self.ins.append(I(line, tag, **meta))
        return self
    def ext(self, lst):
        for x in lst:
            if isinstance(x, (list, tuple)):
                self.ext(x)
            else:
                self.ins.append(x)


def L(text, tag=None):
    return [I(x.strip(), tag) for x in text.strip().split("\n") if x.strip()]


def stamp(P, idx, final=False):
    if not OPT.stamps:
        return
    P("s_waitcnt lgkmcnt(0)")
    P("@flushlg")
    P("v_writelane_b32 v249, %s, %d" % (s(sTS), PEND[0]))
    P("%s %s" % ("s_memtime" if OPT.cyc else "s_memrealtime", s(sTS, 2)))
    keep = PEND[0]
    PEND[0] = idx
    if final:
        P("s_waitcnt lgkmcnt(0)")
        P("@flushlg")
        P("v_writelane_b32 v249, %s, %d" % (s(sTS), idx))
        P("v_lshlrev_b32 v250, 2, %s" % v(vL))
        P("s_mov_b64 exec, 0xffffffff")
        P("buffer_store_dword v249, v250, %s, %s offen" % (srd(S_WS), s(sTSB)))
        P("s_mov_b64 exec, -1")


uid = [0]
PEND = [15]
def label(base):
    uid[0] += 1
    return "L_%s_%d" % (base, uid[0])


def spin_until(P, load_text, want, shift_mask=None):
    lab, done = label("spin"), label("spun")
    P("@waitvm_all")
    P("s_mov_b32 %s, %d" % (s(sSPIN), OPT.spin_max))
    P(lab + ":")
    P(load_text)
    P("s_waitcnt vmcnt(0)")
    P("@flushvm")
    P("v_readfirstlane_b32 %s, v254" % s(sT3))
    P("s_nop 1")
    P("s_cmp_eq_u32 %s, %d" % (s(sT3), want))
    P("s_cbranch_scc1 " + done)
    P("s_sub_u32 %s, %s, 1" % (s(sSPIN), s(sSPIN)))
    P("s_cmp_eq_u32 %s, 0" % s(sSPIN))
    P("s_cbranch_scc1 " + done)
    P("s_sleep 1")
    P("s_branch " + lab)
    P(done + ":")


def prologue(P):
    P("s_cmp_ge_u32 s2, 256")
    P("s_cbranch_scc1 L_exit")
    if OPT.stamps:
        P("%s %s" % ("s_memtime" if OPT.cyc else "s_memrealtime", s(sTS, 2)))
        PEND[0] = 15
    for base, off in ((S_X, 0), (S_QKV, 8), (S_W1, 40), (S_W3, 48), (S_PHI, 16), (S_WO, 24), (S_W2, 56), (S_OUT, 64), (S_DBG, 72), (S_WS, 80)):
        P("s_load_dwordx2 %s, s[0:1], %d" % (s(base, 2), off))
    P("v_and_b32 %s, 63, v0" % v(vL))
    P("v_lshrrev_b32 v15, 6, v0")
    P("s_nop 0")
    P("v_readfirstlane_b32 %s, v15" % s(sW))
    P("s_and_b32 %s, s2, 7" % s(sT0))
    P("s_lshr_b32 %s, s2, 3" % s(sT1))
    P("s_and_b32 %s, %s, 1" % (s(sGH), s(sT0)))
    P("s_lshr_b32 %s, %s, 1" % (s(sT0), s(sT0)))
    P("s_lshl_b32 %s, %s, 2" % (s(sT0), s(sT0)))
    P("s_lshr_b32 %s, %s, 3" % (s(sM), s(sT1)))
    P("s_add_u32 %s, %s, %s" % (s(sM), s(sM), s(sT0)))
    P("s_and_b32 %s, %s, 7" % (s(sGI), s(sT1)))
    P("s_and_b32 %s, %s, 3" % (s(sTY), s(sGI)))
    P("s_lshl_b32 %s, %s, 2" % (s(sT0), s(sGH)))
    P("s_add_u32 %s, %s, %s" % (s(sTY), s(sTY), s(sT0)))
    P("v_lshrrev_b32 v220, 3, %s" % v(vL))
    P("v_and_b32 v221, 7, %s" % v(vL))
    P("v_mul_u32_u24 %s, %d, v220" % (v(vXO), RS_X))
    P("v_lshl_add_u32 %s, v221, 4, %s" % (v(vXO), v(vXO)))
    P("s_lshl_b32 %s, %s, 7" % (s(sT0), s(sM)))
    P("s_lshl_b32 %s, %s, 5" % (s(sT1), s(sW)))
    P("s_add_u32 %s, %s, %s" % (s(sT0), s(sT0), s(sT1)))
    P("s_mul_i32 %s, %s, %d" % (s(sT0), s(sT0), RS_X))
    for p in range(4):
        P("s_add_u32 %s, %s, %d" % (s(sRB + p), s(sGI), p))
        P("s_and_b32 %s, %s, 3" % (s(sRB + p), s(sRB + p)))
        P("s_mul_i32 %s, %s, %d" % (s(sXO + p), s(sRB + p), 8 * RS_X))
        P("s_add_u32 %s, %s, %s" % (s(sXO + p), s(sXO + p), s(sT0)))
    sizes = {S_X: 2048 * 896, S_QKV: 448 * 2688, S_PHI: 16 * 1568, S_WO: 448 * 896, S_W1: 448 * 3584, S_W3: 448 * 3584,
             S_W2: 1792 * 896, S_OUT: 2048 * 896, S_DBG: 256, S_WS: WS_SIZE}
    for b, sz in sizes.items():
        P("s_mov_b32 %s, %d" % (s(b + 2), sz))
        P("s_mov_b32 %s, 0x20000" % s(b + 3))
    P("s_waitcnt lgkmcnt(0)")
    P("@flush")
    stamp(P, 10)


def x_loads():
    return [[I("buffer_load_dwordx4 %s, %s, %s, %s offen offset:%d" % (v(XR(p, j), 4), v(vXO), srd(S_X), s(sXO + p), j * 128), "x%d" % p)]
            for p in range(4) for j in range(7)]


def common_setup(P):
    P("s_mov_b32 %s, 0x3f803f80" % s(sONES))
    P("s_mov_b32 %s, 0x00003f80" % s(sE0))
    P("s_mov_b32 %s, 0x3f800000" % s(sE1))
    P("s_mov_b32 s60, 0")
    P("s_mov_b32 s61, -1")
    P("s_lshl_b32 %s, %s, 11" % (s(sLW16), s(sW)))
    P("s_lshl_b32 %s, %s, 12" % (s(sLW32), s(sW)))
    P("s_lshl_b32 %s, %s, 10" % (s(sLW8), s(sW)))
    P("v_lshlrev_b32 %s, 4, %s" % (v(vL16), v(vL)))
    P("v_lshlrev_b32 %s, 2, %s" % (v(vL4), v(vL)))
    P("v_lshrrev_b32 v220, 3, %s" % v(vL))
    P("v_and_b32 v221, 7, %s" % v(vL))
    P("v_bfe_u32 v223, v220, 1, 1")
    P("v_lshlrev_b32 v223, 2, v223")
    P("v_xor_b32 v223, v223, v221")
    P("v_lshlrev_b32 v236, 4, v223")
    P("v_mul_u32_u24 v237, %d, v220" % RS_QKV)
    P("v_add_u32 %s, v237, v236" % v(vDQ))
    P("v_mul_u32_u24 v237, %d, v220" % RS_FF)
    P("v_add_u32 %s, v237, v236" % v(vDG))
    P("v_xor_b32 v236, 32, v236")
    P("v_add_u32 %s, v237, v236" % v(vDU))
    P("v_lshrrev_b32 v237, 2, %s" % v(vL))
    P("v_mul_u32_u24 v237, %d, v237" % RS_FF)
    P("v_and_b32 v236, 3, %s" % v(vL))
    P("v_lshlrev_b32 v236, 4, v236")
    P("v_add_u32 %s, v237, v236" % v(vDG64))
    P("v_xor_b32 v236, 32, v236")
    P("v_add_u32 %s, v237, v236" % v(vDU64))
    P("v_mov_b32 %s, 1.0" % v(vMASKF))
    P("v_cndmask_b32 %s, %s, 0, %s" % (v(vMASKF), v(vMASKF), sHI))
    if OPT.stamps:
        P("s_lshl_b32 %s, s2, 2" % s(sTSB))
        P("s_add_u32 %s, %s, %s" % (s(sTSB), s(sTSB), s(sW)))
        P("s_lshl_b32 %s, %s, 7" % (s(sTSB), s(sTSB)))
        P("s_add_u32 %s, %s, %d" % (s(sTSB), s(sTSB), WS_TS))


def code_prefetch():
    if not OPT.prefetch_code:
        return []
    P = Prog()
    P("s_getpc_b64 s[50:51]")
    P("L_pcref_%d:" % uid[0])
    P("s_lshr_b32 %s, s2, 3" % s(sT3))
    P("s_and_b32 %s, %s, 7" % (s(sT3), s(sT3)))
    P("s_lshl_b32 %s, %s, 2" % (s(sT3), s(sT3)))
    P("s_add_u32 %s, %s, %s" % (s(sT3), s(sT3), s(sW)))
    P("s_lshl_b32 %s, %s, 11" % (s(sT3), s(sT3)))
    P("s_sub_u32 s50, s50, L_pcref_%d-%s" % (uid[0], NAME))
    P("s_subb_u32 s51, s51, 0")
    P("v_and_b32 v251, 15, %s" % v(vL))
    P("v_lshlrev_b32 v251, 7, v251")
    P("v_add_u32 v251, %s, v251" % s(sT3))
    P("v_min_u32 v251, L_exit-%s, v251" % NAME)
    P("global_load_dword v252, v251, s[50:51]", tag="pf")
    uid[0] += 1
    return P.ins


def dma(srd_base, voff, sbase, soff_const, ldsbase_s, lds_const, tag, extra=""):
    g = []
    g += L("s_add_u32 %s, %s, %d" % (s(sSOFF), s(sbase), soff_const)) if soff_const else L("s_mov_b32 %s, %s" % (s(sSOFF), s(sbase)))
    if ldsbase_s is None:
        g = L("s_mov_b32 m0, %d" % lds_const) + g
    else:
        g = L("s_add_u32 m0, %s, %d" % (s(ldsbase_s), lds_const)) + g
    g += [I("buffer_load_dwordx4 %s, %s, %s offen lds%s" % (v(voff), srd(srd_base), s(sSOFF), extra), tag)]
    return g


RING_OFF = [0]


class Chunk:
    def __init__(self, kind, row0, nrows, idx):
        self.kind, self.row0, self.nrows, self.idx = kind, row0, nrows, idx
        self.slot = SLOT * ((idx + RING_OFF[0]) % NSLOT)
        self.tag = "c%d" % idx


def chunk_dma(ch):
    k, r0, sl, tag = ch.kind, ch.row0, ch.slot, ch.tag
    if OPT.hot_w:
        r0 = 0
    out = []
    if k in ("ffA", "ffB"):
        sb = sB2 if k == "ffA" else sB3
        for blk, (sr, vo) in enumerate(((S_W1, vDG), (S_W3, vDU))):
            for i in range(2):
                out.append(dma(sr, vo, sb, (r0 + 8 * i) * RS_FF, sLW16, sl + blk * 8192 + i * 1024, tag))
    elif k in ("q", "k", "v"):
        sec = {"q": 0, "k": 896, "v": 1792}[k]
        if ch.nrows == 128:
            for i in range(4):
                out.append(dma(S_QKV, vDQ, sB4, (r0 + 8 * i) * RS_QKV + sec, sLW32, sl + i * 1024, tag))
        else:
            for i in range(2):
                out.append(dma(S_QKV, vDQ, sB5, (r0 + 8 * i) * RS_QKV + sec, sLW16, sl + i * 1024, tag))
    elif k[0] == "h":
        b32, b16 = (sB0, sB1) if k == "hA" else (sB4, sB5)
        co = 64 if k == "hF1" else 0
        if ch.nrows == 128:
            for blk, (sr, vo) in enumerate(((S_W1, vDG64), (S_W3, vDU64))):
                for i in range(2):
                    out.append(dma(sr, vo, b32, (r0 + 16 * i) * RS_FF + co, sLW16, sl + blk * 8192 + i * 1024, tag))
        else:
            for blk, (sr, vo) in enumerate(((S_W1, vDG64), (S_W3, vDU64))):
                out.append(dma(sr, vo, b16, r0 * RS_FF + co, sLW8, sl + blk * 8192, tag))
    return out


def tile_addr_setup(P, kind, base):
    l = v(vL)
    P("v_lshrrev_b32 v220, 5, %s" % l)
    P("v_bfe_u32 v222, %s, 2, 2" % l)
    P("v_lshl_add_u32 v220, v220, 3, v222")
    P("v_bfe_u32 v221, %s, 4, 1" % l)
    P("v_and_b32 v223, 3, %s" % l)
    P("v_bfe_u32 v222, %s, 3, 1" % l)
    n = 0
    if kind == "ff":
        P("v_lshlrev_b32 v236, 7, v220")
        P("v_lshl_add_u32 v236, v221, 13, v236")
        P("v_lshl_add_u32 v236, v223, 3, v236")
        P("v_lshl_or_b32 v237, v222, 1, v221")
        for t in range(4):
            P("v_xor_b32 v220, %d, v237" % t)
            P("v_lshl_add_u32 %s, v220, 5, v236" % v(base + t))
        n = 4
    elif kind == "att":
        P("v_lshlrev_b32 v236, 7, v220")
        P("v_lshlrev_b32 v237, 5, v221")
        P("v_lshl_add_u32 v237, v223, 3, v237")
        P("v_lshlrev_b32 v222, 6, v222")
        for j in range(2):
            P("v_add_u32 v220, %d, v237" % (56 * j))
            P("v_xor_b32 v220, v220, v222")
            P("v_add_u32 %s, v220, v236" % v(base + j))
        n = 2
    elif kind == "h":
        P("v_lshlrev_b32 v236, 6, v220")
        P("v_lshl_add_u32 v236, v221, 13, v236")
        P("v_lshl_add_u32 v236, v223, 3, v236")
        for t in range(2):
            P("v_xor_b32 v220, %d, v221" % t)
            P("v_lshl_add_u32 %s, v220, 5, v236" % v(base + t))
        n = 2
    for t in range(n):
        P("v_add_u32 %s, 0x4000, %s" % (v(base + 4 + t), v(base + t)))


def tile_reads(addr_base, t, ch, srow, rowbytes, buf):
    off = ch.slot + srow * 16 * rowbytes
    reg = addr_base + t
    if ch.slot >= 65536:
        reg, off = addr_base + 4 + t, off - 16384
    assert 0 <= off and off + 4 * rowbytes <= 65535
    return [I("ds_read_b64_tr_b16 %s, %s offset:%d" % (a(buf, 2), v(reg), off)),
            I("ds_read_b64_tr_b16 %s, %s offset:%d" % (a(buf + 2, 2), v(reg), off + 4 * rowbytes))]


class Group:
    def __init__(self, kind, tiles, accs, addr_base):
        self.kind, self.tiles, self.accs, self.addr_base = kind, tiles, accs, addr_base


def build_p1_stream(groups, fillers, bar_pre=None, bar_post=None, tail=None):
    bar_pre, bar_post = bar_pre or {}, bar_post or {}
    chunks, mf = [], []
    for gi, g in enumerate(groups):
        four = len(g.tiles) == 4
        plan = [(64 * c, 64) for c in range(7)] if four else [(0, 128), (128, 128), (256, 128), (384, 64)]
        rowbytes = 64 if g.kind[0] == "h" else 128
        g.first_chunk = len(chunks)
        for (r0, nr) in plan:
            ch = Chunk(g.kind, r0, nr, len(chunks))
            chunks.append(ch)
            for sr in range(nr // 16):
                for ti, t in enumerate(g.tiles):
                    mf.append(dict(g=gi, ch=ch, srow=sr, t=t, acc=g.accs[ti], ks=(r0 // 16) + sr, rowbytes=rowbytes,
                                   addr=g.addr_base, first_in_chunk=(sr == 0 and ti == 0)))
    N = len(mf)
    LA = 4
    for n, m in enumerate(mf):
        m["buf"] = A_WB + 4 * (n % 8)
    slots = [[] for _ in range(N)]
    pre = []

    def reads(m):
        return tile_reads(m["addr"], m["t"], m["ch"], m["srow"], m["rowbytes"], m["buf"])
    pre += L("@waitvm %s" % chunks[0].tag) + L("s_barrier") + bar_post.get(0, [])
    for n in range(LA):
        pre += reads(mf[n])
    pending_dma = []
    last_dma = -10
    for n, m in enumerate(mf):
        sl = slots[n]
        C = "0" if m["ks"] == 0 else v(m["acc"], 16)
        mi = I("v_mfma_f32_32x32x16_bf16 %s, %s, %s, %s" % (v(m["acc"], 16), a(m["buf"], 4), a(A_X + 4 * m["ks"], 4), C))
        if n % 2 == 0 and n + 1 < N and OPT.pair_wait:
            mi.meta["also_wait"] = {("a", mf[n + 1]["buf"] + k) for k in range(4)}
        sl.append(mi)
        if n % 2 == 0:
            sl.append(I("@cost"))
        if n + LA < N:
            nx = mf[n + LA]
            if nx["first_in_chunk"]:
                c = nx["ch"].idx
                assert not any(x.tag == nx["ch"].tag for g_ in pending_dma for x in g_), "dma not issued before its wait"
                pre_s, post_s = [], []
                if OPT.stamps and OPT.chunkst and OPT.cs0 <= c < OPT.cs0 + 8:
                    Pq = Prog(); stamp(Pq, 16 + 2 * (c - OPT.cs0)); pre_s = Pq.ins
                    Pq = Prog(); stamp(Pq, 17 + 2 * (c - OPT.cs0)); post_s = Pq.ins
                sl += pre_s + bar_pre.get(c, []) + L("@waitvm %s" % nx["ch"].tag) + ([] if OPT.no_bar else L("s_barrier")) + post_s + bar_post.get(c, [])
                nc = c + NSLOT - 2
                if c >= 2 and nc < len(chunks) and not OPT.no_dma:
                    pending_dma += chunk_dma(chunks[nc])
                elif c >= 2 and tail and nc - len(chunks) < len(tail):
                    pending_dma += tail[nc - len(chunks)]
            if not OPT.no_reads:
                sl += reads(nx)
        if pending_dma and (n - last_dma >= OPT.dma_gap):
            sl += pending_dma.pop(0)
            last_dma = n
    assert not pending_dma
    for gi, lo, hi, fl in ([] if OPT.no_fill else fillers):
        if not fl:
            continue
        idx = [n for n, m in enumerate(mf) if m["g"] == gi]
        place_fillers(slots, idx[lo:hi], fl)
    if OPT.stamps and not OPT.chunkst:
        seen = set()
        for n, m in enumerate(mf):
            if m["g"] not in seen and m["g"] > 0:
                Pq = Prog(); stamp(Pq, 11 + m["g"]); slots[n] = Pq.ins + slots[n]
            seen.add(m["g"])
    body = []
    for sl in slots:
        body += sl
    return chunks, pre, body


def group_chunks(groups):
    chunks = []
    for g in groups:
        plan = [(64 * c, 64) for c in range(7)] if len(g.tiles) == 4 else [(0, 128), (128, 128), (256, 128), (384, 64)]
        for (r0, nr) in plan:
            chunks.append(Chunk(g.kind, r0, nr, len(chunks)))
    return chunks


def cost(x):
    if isinstance(x, (list, tuple)):
        return sum(cost(y) for y in x)
    k, op = x.kind, x.op
    if k in ("label", "none"):
        return 0.0
    if k == "pseudo":
        return 3.0 if op == "@cost" else (2.0 if op.startswith("@wait") else 0.0)
    if x.meta.get("raw"):
        return 0.0
    if k == "mfma":
        return 32.0 if x.meta.get("filler") else 8.0
    if k == "vmem":
        return 10.0 if "atomic" in op else 18.0
    if k == "ds":
        return 9.0 if op == "ds_write_b128" else (6.0 if op.startswith("ds_write") else 4.4)
    if k == "valu":
        return 8.8 if x.meta.get("trans") else 4.4
    if op == "s_nop":
        return 4.4 * (int(x.text.split()[1]) + 1)
    if op == "s_barrier":
        return 8.0
    return 2.2


def place_fillers(slots, idx, fl):
    total = cost(fl)
    base = [cost(slots[n]) for n in idx]
    lo, hi = 0.0, max(base) + total
    for _ in range(40):
        mid = (lo + hi) / 2
        if sum(max(0.0, mid - b) for b in base) >= total:
            hi = mid
        else:
            lo = mid
    room = [max(0.0, hi - b) for b in base]
    pos, done, tgt = 0, 0.0, 0.0
    for k, n_ in enumerate(idx):
        tgt += room[k]
        while pos < len(fl) and (done + cost(fl[pos]) / 2.0 <= tgt or k == len(idx) - 1):
            slots[n_] += fl[pos]
            done += cost(fl[pos])
            pos += 1
    assert pos == len(fl)


def G(lst):
    return [[x] for x in lst]


def merge(a_, b_):
    out, nb, j = [], len(b_), 0
    na = max(1, len(a_))
    for i, g in enumerate(a_):
        out.append(g)
        tgt = (nb * (i + 1)) // na
        while j < tgt:
            out.append(b_[j]); j += 1
    out += b_[j:]
    return out


def flat(groups):
    o = []
    for g in groups:
        o += g if isinstance(g, list) else [g]
    return o


def layernorm(P, vm):
    T = vT

    def regs(p): return [XR(p, j) + d for j in range(7) for d in range(4)]
    def st(p): b = T + 4 * (p % 2); return b, b + 1, b + 2, b + 3

    def S(p):
        sA, sB_, qA, qB = st(p)
        o = []
        for k, x in enumerate(regs(p)):
            sa, qa = (sA, qA) if k % 2 == 0 else (sB_, qB)
            o.append(I("v_dot2_f32_bf16 %s, %s, %s, %s" % (v(sa), v(x), s(sONES), "0" if k < 2 else v(sa))))
            o.append(I("v_dot2_f32_bf16 %s, %s, %s, %s" % (v(qa), v(x), v(x), "0" if k < 2 else v(qa))))
        return o

    def F(p):
        sA, sB_, qA, qB = st(p)
        o = L("v_add_f32 %s, %s, %s" % (v(sA), v(sA), v(sB_)))
        o += L("v_add_f32 %s, %s, %s" % (v(qA), v(qA), v(qB)))
        for ctl in ("quad_perm:[1,0,3,2]", "quad_perm:[2,3,0,1]", "row_half_mirror"):
            o += L("v_add_f32_dpp %s, %s, %s %s row_mask:0xf bank_mask:0xf" % (v(sA), v(sA), v(sA), ctl))
            o += L("v_add_f32_dpp %s, %s, %s %s row_mask:0xf bank_mask:0xf" % (v(qA), v(qA), v(qA), ctl))
        inv = 0x3B124925
        o += L("v_mul_f32 %s, 0x%x, %s" % (v(sA), inv, v(sA)))
        o += L("v_mul_f32 %s, 0x%x, %s" % (v(qA), inv, v(qA)))
        o += L("v_fma_f32 %s, -%s, %s, %s" % (v(qA), v(sA), v(sA), v(qA)))
        o += L("v_cvt_pk_bf16_f32 %s, 0, %s" % (v(sA), v(sA)))
        o += L("v_max_f32 %s, 0, %s" % (v(qA), v(qA)))
        o += L("v_sub_f32 %s, 0, %s" % (v(sB_), v(sA)))
        o += L("v_cvt_pk_bf16_f32 %s, 0, %s" % (v(qA), v(qA)))
        o += L("v_add_f32 %s, 0x3727c5ac, %s" % (v(qA), v(qA)))
        o += L("v_cvt_pk_bf16_f32 %s, 0, %s" % (v(qA), v(qA)))
        o += L("v_sqrt_f32 %s, %s" % (v(qA), v(qA)))
        o += L("s_lshl_b32 %s, %s, 5" % (s(sT1), s(sRB + p)))
        o += L("v_cvt_pk_bf16_f32 %s, 0, %s" % (v(qA), v(qA)))
        o += L("v_add_u32 %s, %s, %s" % (v(vLT), s(sT1), v(vLRW)))
        o += L("v_rcp_f32 %s, %s" % (v(qA), v(qA)))
        o += L("s_mul_i32 %s, %s, %d" % (s(sT1), s(sRB + p), 8 * XROW))
        o += L("v_add_u32 %s, %s, %s" % (v(vXW + p), s(sT1), v(vLW)))
        o += L("ds_write_b32 %s, %s" % (v(vLT), v(qA)))
        return o

    def C(p):
        sA, sB_, qA, qB = st(p)
        tt = T + 8
        o = []
        r = regs(p)
        for b0 in range(0, 28, 4):
            batch = r[b0:b0 + 4]
            for k, x in enumerate(batch):
                o.append(I("v_dot2_f32_bf16 %s, %s, %s, %s" % (v(tt + 2 * k), v(x), s(sE0), v(sB_))))
                o.append(I("v_dot2_f32_bf16 %s, %s, %s, %s" % (v(tt + 2 * k + 1), v(x), s(sE1), v(sB_))))
            for k, x in enumerate(batch):
                o.append(I("v_cvt_pk_bf16_f32 %s, %s, %s" % (v(x), v(tt + 2 * k), v(tt + 2 * k + 1))))
            j = b0 // 4
            if j < 4:
                o.append(I("ds_write_b128 %s, %s offset:%d" % (v(vXW + p), v(XR(p, j), 4), j * 128)))
        return o
    P.ext(S(0))
    P.ext(flat(vm[0]))
    for p in range(4):
        if p < 3:
            P.ext(flat(merge(G(S(p + 1)), G(F(p)))))
            P.ext(flat(merge(G(C(p)), vm[p + 1])))
        else:
            P.ext(F(p))
            P.ext(C(p))
    for sx in range(16):
        P("ds_read_b128 %s, %s offset:%d" % (a(A_X + 4 * sx, 4), v(vLF), sx * 32))
    P("ds_read_b32 %s, %s" % (v(vR), v(vLRR)))
    P("v_mul_f32 %s, 0x%x, %s" % (v(vC1), NLOG2E, v(vR)))
    P("v_mul_f32 %s, 0x%x, %s" % (v(vCS), LOG2E, v(vR)))


def ln_stage_b():
    o = []
    for p in range(4):
        for j in range(4, 7):
            o.append(I("ds_write_b128 %s, %s offset:%d" % (v(vXW + p), v(XR(p, j), 4), (j - 4) * 128)))
    for sx in range(12):
        o.append(I("ds_read_b128 %s, %s offset:%d" % (a(A_X + 64 + 4 * sx, 4), v(vLF), sx * 32)))
    return o


def ln_addr_setup(P):
    l = v(vL)
    P("s_mul_i32 %s, %s, %d" % (s(sT1), s(sW), XST_W))
    P("s_add_u32 %s, %s, %d" % (s(sT1), s(sT1), L_XST))
    P("v_lshrrev_b32 v220, 3, %s" % l)
    P("v_and_b32 v221, 7, %s" % l)
    P("v_mul_u32_u24 %s, %d, v220" % (v(vLW), XROW))
    P("v_lshl_add_u32 %s, v221, 4, %s" % (v(vLW), v(vLW)))
    P("v_add_u32 %s, %s, %s" % (v(vLW), s(sT1), v(vLW)))
    P("s_lshl_b32 %s, %s, 7" % (s(sT2), s(sW)))
    P("s_add_u32 %s, %s, %d" % (s(sT2), s(sT2), L_RSTAT))
    P("v_lshlrev_b32 %s, 2, v220" % v(vLRW))
    P("v_add_u32 %s, %s, %s" % (v(vLRW), s(sT2), v(vLRW)))
    P("v_and_b32 v220, 31, %s" % l)
    P("v_lshrrev_b32 v221, 5, %s" % l)
    P("v_mul_u32_u24 %s, %d, v220" % (v(vLF), XROW))
    P("v_lshl_add_u32 %s, v221, 4, %s" % (v(vLF), v(vLF)))
    P("v_add_u32 %s, %s, %s" % (v(vLF), s(sT1), v(vLF)))
    P("v_lshlrev_b32 %s, 2, v220" % v(vLRR))
    P("v_add_u32 %s, %s, %s" % (v(vLRR), s(sT2), v(vLRR)))


def ffn_epilogue(acc, tmp, sbase, toff, tag="hst"):
    Gr = [acc + i for i in range(8)]
    U = [acc + 8 + i for i in range(8)]
    T = [tmp + i for i in range(8)]
    o = []
    o += [I("v_mul_f32 %s, %s, %s" % (v(T[i]), v(vC1), v(Gr[i]))) for i in range(8)]
    o += [I("v_exp_f32 %s, %s" % (v(T[i]), v(T[i]))) for i in range(8)]
    o += [I("v_mul_f32 %s, %s, %s" % (v(Gr[i]), v(Gr[i]), v(U[i]))) for i in range(8)]
    o += [I("v_add_f32 %s, 1.0, %s" % (v(T[i]), v(T[i]))) for i in range(8)]
    o += [I("v_rcp_f32 %s, %s" % (v(T[i]), v(T[i]))) for i in range(8)]
    o += [I("v_mul_f32 %s, %s, %s" % (v(Gr[i]), v(Gr[i]), v(T[i]))) for i in range(8)]
    o += [I("v_cvt_pk_bf16_f32 %s, %s, %s" % (v(U[k]), v(Gr[2 * k]), v(Gr[2 * k + 1]))) for k in range(4)]
    o += [I("buffer_store_dwordx4 %s, %s, %s, %s offen offset:%d sc1" % (v(U[0], 4), v(vL16), srd(S_WS), s(sbase), toff), tag)]
    return o


def exp_pm(Pr, TA, tmp):
    mx, mn, t0, t1 = [tmp + i for i in range(4)]
    o = []
    A = o.append
    A(I("v_max3_f32 %s, %s, %s, %s" % (v(mx), v(Pr[0]), v(Pr[1]), v(Pr[2]))))
    A(I("v_min3_f32 %s, %s, %s, %s" % (v(mn), v(Pr[0]), v(Pr[1]), v(Pr[2]))))
    for k in range(3, 15, 2):
        A(I("v_max3_f32 %s, %s, %s, %s" % (v(mx), v(mx), v(Pr[k]), v(Pr[k + 1]))))
        A(I("v_min3_f32 %s, %s, %s, %s" % (v(mn), v(mn), v(Pr[k]), v(Pr[k + 1]))))
    A(I("v_max_f32 %s, %s, %s" % (v(mx), v(mx), v(Pr[15]))))
    A(I("v_min_f32 %s, %s, %s" % (v(mn), v(mn), v(Pr[15]))))
    A(I("v_mov_b32 %s, %s" % (v(t0), v(mx))))
    A(I("v_mov_b32 %s, %s" % (v(t1), v(mn))))
    A(I("v_permlane32_swap_b32 %s, %s" % (v(mx), v(t0))))
    A(I("v_permlane32_swap_b32 %s, %s" % (v(mn), v(t1))))
    A(I("v_max_f32 %s, %s, %s" % (v(mx), v(mx), v(t0))))
    A(I("v_min_f32 %s, %s, %s" % (v(mn), v(mn), v(t1))))
    A(I("v_mul_f32 %s, %s, %s" % (v(mx), v(mx), v(vCS))))
    A(I("v_mul_f32 %s, %s, %s" % (v(mn), v(mn), v(vCS))))
    for i in range(16):
        A(I("v_fma_f32 %s, %s, %s, -%s" % (v(TA[i]), v(Pr[i]), v(vCS), v(mx))))
        A(I("v_fma_f32 %s, %s, %s, %s" % (v(Pr[i]), v(Pr[i]), v(vC1), v(mn))))
    for i in range(16):
        A(I("v_exp_f32 %s, %s" % (v(TA[i]), v(TA[i]))))
        A(I("v_exp_f32 %s, %s" % (v(Pr[i]), v(Pr[i]))))
    return o


def pack_pm(Pr, TA):
    o = []
    for k in range(8):
        o.append(I("v_cvt_pk_bf16_f32 %s, %s, %s" % (v(TA[k]), v(TA[2 * k]), v(TA[2 * k + 1]))))
        o.append(I("v_cvt_pk_bf16_f32 %s, %s, %s" % (v(Pr[k]), v(Pr[2 * k]), v(Pr[2 * k + 1]))))
    return o


def k_softmax(Pr, TA, tmp, head):
    sp, sn, sp2, sn2, t0, t1 = [tmp + 4 + i for i in range(4)] + [tmp + 2, tmp + 3]
    o = exp_pm(Pr, TA, tmp)
    A = o.append
    A(I("v_add_f32 %s, %s, %s" % (v(sp), v(TA[0]), v(TA[1]))))
    A(I("v_add_f32 %s, %s, %s" % (v(sn), v(Pr[0]), v(Pr[1]))))
    A(I("v_add_f32 %s, %s, %s" % (v(sp2), v(TA[12]), v(TA[13]))))
    A(I("v_add_f32 %s, %s, %s" % (v(sn2), v(Pr[12]), v(Pr[13]))))
    for i in range(2, 12):
        A(I("v_add_f32 %s, %s, %s" % (v(sp), v(sp), v(TA[i]))))
        A(I("v_add_f32 %s, %s, %s" % (v(sn), v(sn), v(Pr[i]))))
        if i < 4:
            A(I("v_add_f32 %s, %s, %s" % (v(sp2), v(sp2), v(TA[12 + i]))))
            A(I("v_add_f32 %s, %s, %s" % (v(sn2), v(sn2), v(Pr[12 + i]))))
    A(I("v_fma_f32 %s, %s, %s, %s" % (v(sp), v(sp2), v(vMASKF), v(sp))))
    A(I("v_fma_f32 %s, %s, %s, %s" % (v(sn), v(sn2), v(vMASKF), v(sn))))
    A(I("v_mov_b32 %s, %s" % (v(t0), v(sp))))
    A(I("v_mov_b32 %s, %s" % (v(t1), v(sn))))
    A(I("v_permlane32_swap_b32 %s, %s" % (v(sp), v(t0))))
    A(I("v_permlane32_swap_b32 %s, %s" % (v(sn), v(t1))))
    A(I("v_add_f32 %s, %s, %s" % (v(sp), v(sp), v(t0))))
    A(I("v_add_f32 %s, %s, %s" % (v(sn), v(sn), v(t1))))
    A(I("v_rcp_f32 %s, %s" % (v(sn), v(sn))))
    A(I("v_rcp_f32 %s, %s" % (v(sp2), v(sp))))
    A(I("v_mul_f32 %s, %s, %s" % (v(sn), v(sn), v(sp))))
    A(I("v_mul_f32 %s, %s, %s" % (v(vVF + head), v(sp2), v(vR))))
    A(I("v_cvt_pk_bf16_f32 %s, %s, 0" % (v(vONE + head), v(sp2))))
    for i in range(16):
        A(I("v_mul_f32 %s, %s, %s" % (v(Pr[i]), v(Pr[i]), v(sn))))
    return o + pack_pm(Pr, TA)


def feature_logits(acc, pk, dst, head):
    o = []
    for k in range(8):
        o.append(I("v_cvt_pk_bf16_f32 %s, %s, %s" % (v(pk + k), v(acc + 2 * k), v(acc + 2 * k + 1))))
    for k in (6, 7):
        o.append(I("v_cndmask_b32 %s, %s, 0, %s" % (v(pk + k), v(pk + k), sHI)))
    o.append(I("v_mfma_f32_32x32x16_bf16 %s, %s, %s, 0" % (v(dst, 16), a(A_PHI + 8 * head, 4), v(pk, 4)), filler=True))
    o.append(I("v_mfma_f32_32x32x16_bf16 %s, %s, %s, %s" % (v(dst, 16), a(A_PHI + 8 * head + 4, 4), v(pk + 4, 4), v(dst, 16)), filler=True))
    return o


def exch_addr_setup():
    o = []
    l = v(vL)
    A = lambda t: o.append(I(t))
    A("v_and_b32 v220, 1, %s" % l)
    A("v_bfe_u32 v221, %s, 2, 2" % l)
    A("v_lshl_or_b32 v220, v221, 1, v220")
    A("v_bfe_u32 v221, %s, 1, 1" % l)
    A("v_lshl_or_b32 v220, v221, 3, v220")
    A("v_lshrrev_b32 v221, 5, %s" % l)
    A("v_xor_b32 v220, v220, v221")
    A("v_lshlrev_b32 v220, 3, v220")
    A("v_and_b32 v221, 31, %s" % l)
    A("v_lshl_add_u32 v220, v221, 7, v220")
    A("s_lshl_b32 %s, %s, 12" % (s(sP0), s(sW)))
    A("s_add_u32 %s, %s, %d" % (s(sP0), s(sP0), L_PHI))
    A("v_add_u32 v220, %s, v220" % s(sP0))
    for c in range(8):
        A("v_xor_b32 %s, %d, v220" % (v(vXA + c), 16 * c))
    A("v_bfe_u32 v220, %s, 2, 1" % l)
    A("v_bfe_u32 v221, %s, 3, 1" % l)
    A("v_lshl_or_b32 v220, v221, 3, v220")
    A("v_lshrrev_b32 v221, 5, %s" % l)
    A("v_lshl_or_b32 v220, v221, 2, v220")
    A("v_bfe_u32 v222, %s, 4, 1" % l)
    A("v_and_b32 v223, 3, %s" % l)
    A("v_lshl_or_b32 v222, v222, 2, v223")
    A("v_bfe_u32 v223, %s, 2, 2" % l)
    A("v_lshl_or_b32 v223, v221, 3, v223")
    A("v_lshlrev_b32 v223, 7, v223")
    A("s_and_b32 %s, %s, 1" % (s(sP0), s(sW)))
    A("s_lshl_b32 %s, %s, 3" % (s(sP0), s(sP0)))
    A("s_lshr_b32 %s, %s, 1" % (s(sP1_), s(sW)))
    A("s_lshl_b32 %s, %s, 3" % (s(sP2_), s(sP1_)))
    A("s_lshl_b32 %s, %s, 14" % (s(sP1_), s(sP1_)))
    A("s_add_u32 %s, %s, %d" % (s(sP1_), s(sP1_), L_PHI))
    for q in range(2):
        A("v_xor_b32 v236, %d, v220" % (2 * q))
        A("v_or_b32 v237, %s, v222" % s(sP0))
        A("v_xor_b32 v237, v237, v236")
        A("v_lshl_add_u32 v237, v237, 3, v223")
        A("v_add_u32 v237, %d, v237" % (512 * q))
        A("v_add_u32 %s, %s, v237" % (v(vKA + q), s(sP1_)))
        A("v_or_b32 v237, %s, v222" % s(sP2_))
        A("v_xor_b32 v237, v237, v236")
        A("v_lshl_add_u32 v237, v237, 3, v223")
        A("v_add_u32 %s, %d, v237" % (v(vKA + 2 + q), L_V + 512 * q))
    return o


vWP = 142
vFE = 143


def wphi_addr():
    o = []
    l = v(vL)
    A = lambda t: o.append(I(t))
    A("v_bfe_u32 v220, %s, 4, 1" % l)
    A("v_and_b32 v221, 3, %s" % l)
    A("v_lshl_or_b32 v220, v220, 2, v221")
    A("v_cmp_eq_u32 vcc, 7, v220")
    A("v_lshlrev_b32 v220, 3, v220")
    A("v_lshrrev_b32 v221, 5, %s" % l)
    A("v_cndmask_b32 v220, v220, 0, vcc")
    A("v_bfe_u32 v222, %s, 2, 2" % l)
    A("v_lshl_or_b32 v221, v221, 2, v222")
    A("v_mul_u32_u24 v221, 56, v221")
    A("v_add_u32 v220, v220, v221")
    A("v_add_u32 %s, %d, v220" % (v(vWP), L_WPHI))
    return o


def wphi_frags():
    o = []
    for j in range(2):
        for sx in range(2):
            for q in range(2):
                off = j * 1568 + (16 * sx + 8 * q) * 56
                o.append(I("ds_read_b64_tr_b16 %s, %s offset:%d" % (a(A_PHI + 8 * j + 4 * sx + 2 * q, 2), v(vWP), off)))
    return o


def v_epilogue(accV):
    o = []
    for j in range(2):
        acc = accV[j]
        o += [I("v_mul_f32 %s, %s, %s" % (v(acc + i), v(acc + i), v(vVF + j))) for i in range(16)]
        o += [I("v_cvt_pk_bf16_f32 %s, %s, %s" % (v(acc + k), v(acc + 2 * k), v(acc + 2 * k + 1))) for k in range(8)]
        o.append(I("v_cndmask_b32 %s, %s, %s, %s" % (v(acc + 6), v(acc + 6), v(vONE + j), sHI)))
        o.append(I("v_cndmask_b32 %s, %s, 0, %s" % (v(acc + 7), v(acc + 7), sHI)))
        for rq in range(4):
            o.append(I("ds_write_b64 %s, %s offset:%d" % (v(vXA + 4 * j + rq), v(acc + 2 * rq, 2), L_V - L_PHI), "phiw"))
    return o


def k_epilogue(accK, dsts):
    o = []
    for j in range(2):
        pk = vT + 32 + 8 * j
        o += feature_logits(accK[j], pk, dsts[j], j)
    for j in range(2):
        Pr = [dsts[j] + i for i in range(16)]
        TA = [vT + i for i in range(16)]
        o += k_softmax(Pr, TA, vT + 16, j)
        for rq in range(4):
            o.append(I("ds_write_b64 %s, %s offset:%d" % (v(vXA + rq), v(TA[2 * rq], 2), j * 16384), "phiw"))
            o.append(I("ds_write_b64 %s, %s offset:%d" % (v(vXA + 4 + rq), v(Pr[2 * rq], 2), j * 16384), "phiw"))
    return o


def kv_tile(dst):
    o = []
    bufA, bufB = A_KVF, A_KVF + 32
    for ks in range(8):
        for q in range(2):
            o.append(I("ds_read_b64_tr_b16 %s, %s offset:%d" % (a(bufA + 4 * ks + 2 * q, 2), v(vKA + q), ks * 2048)))
            o.append(I("ds_read_b64_tr_b16 %s, %s offset:%d" % (a(bufB + 4 * ks + 2 * q, 2), v(vKA + 2 + q), ks * 2048)))
    for ks in range(8):
        o.append(I("v_mfma_f32_32x32x16_bf16 %s, %s, %s, %s" % (v(dst, 16), a(bufA + 4 * ks, 4), a(bufB + 4 * ks, 4), "0" if ks == 0 else v(dst, 16)), filler=True))
    return o


def kv_atomics(src):
    return [I("buffer_atomic_add_f32 %s, %s, %s, %s offen offset:%d" % (v(src + r), v(vL4), srd(S_WS), s(sKV), r * 256), "kvat") for r in range(16)]


def raw(lst):
    for x in lst:
        x.meta["raw"] = True
    return lst


def check_flag(vreg, dbg_off_s):
    ok, lab = label("zok"), label("zspin")
    o = L("v_readfirstlane_b32 %s, %s" % (s(sT3), v(vreg)))
    o += L("s_nop 1")
    o += L("s_cmp_eq_u32 %s, 1" % s(sT3))
    o += L("s_cbranch_scc1 " + ok)
    o += raw(L("""s_mov_b32 %s, %d
%s:
buffer_load_dword %s, off, %s, %s sc1
s_waitcnt vmcnt(0)
v_readfirstlane_b32 %s, %s
s_nop 1
s_cmp_eq_u32 %s, 1
s_cbranch_scc1 %s
s_sub_u32 %s, %s, 1
s_cmp_eq_u32 %s, 0
s_cbranch_scc1 %s
s_sleep 1
s_branch %s""" % (s(sSPIN), OPT.spin_max, lab, v(vreg), srd(S_DBG), s(dbg_off_s), s(sT3), v(vreg), s(sT3), ok,
                  s(sSPIN), s(sSPIN), s(sSPIN), ok, lab)))
    o += L(ok + ":")
    return o


def only_wave0(insts):
    skip = label("nw0")
    return L("s_cmp_lg_u32 %s, 0" % s(sW)) + L("s_cbranch_scc1 " + skip) + raw(insts) + L(skip + ":")


def signal(counter_s):
    return only_wave0(L("v_mov_b32 v253, 1") + L("s_mov_b64 exec, 1") +
                      L("buffer_atomic_add v253, off, %s, %s sc1" % (srd(S_WS), s(counter_s))) + L("s_mov_b64 exec, -1"))


def zero_init(is_A):
    skip = label("nz")
    o = []
    if is_A:
        o += L("s_lshl_b32 %s, %s, 1" % (s(sT2), s(sTY)))
        o += L("s_cmp_lg_u32 %s, %s" % (s(sT2), s(sM)))
        o += L("s_cbranch_scc1 " + skip)
        blk = L("v_mov_b32 v138, 0\nv_mov_b32 v139, 0\nv_mov_b32 v140, 0\nv_mov_b32 v141, 0")
        blk += L("s_lshl_b32 %s, %s, 14" % (s(sT2), s(sTY)))
        blk += L("s_add_u32 %s, %s, %s" % (s(sT2), s(sT2), s(sLW32)))
        blk += L("s_add_u32 %s, %s, %d" % (s(sT2), s(sT2), WS_KV))
        for i in range(4):
            blk += L("buffer_store_dwordx4 v[138:141], %s, %s, %s offen offset:%d sc1" % (v(vL16), srd(S_WS), s(sT2), i * 1024))
        blk += L("buffer_store_dword v138, off, %s, %s sc1" % (srd(S_WS), s(sCNTA)))
        o += raw(blk)
    else:
        o += L("s_cmp_lg_u32 %s, 0" % s(sTY))
        o += L("s_cbranch_scc1 " + skip)
        blk = L("v_mov_b32 v138, 0")
        blk += L("buffer_store_dword v138, off, %s, %s sc1" % (srd(S_WS), s(sCNTB)))
        blk += L("s_add_u32 %s, %s, %d" % (s(sT2), s(sCNTB), CNT_O - CNT_H))
        blk += L("buffer_store_dword v138, off, %s, %s sc1" % (srd(S_WS), s(sT2)))
        blk += L("buffer_store_dword v138, off, %s, %s sc1" % (srd(S_WS), s(sCNTE_)))
        o += raw(blk)
    o += L(skip + ":")
    return o


def warmup():
    o = []
    done = label("wud")
    labs = [label("wu") for _ in range(3)]
    o += L("v_min_u32 v143, 48, %s" % v(vL))
    o += L("s_mul_i32 %s, s2, 49" % s(sT2))
    o += L("v_add_u32 v143, %s, v143" % s(sT2))
    o += L("v_lshlrev_b32 v143, 7, v143")
    o += L("s_cmp_eq_u32 %s, 1" % s(sW)) + L("s_cbranch_scc1 " + labs[0])
    o += L("s_cmp_eq_u32 %s, 2" % s(sW)) + L("s_cbranch_scc1 " + labs[1])
    o += L("s_cmp_eq_u32 %s, 3" % s(sW)) + L("s_cbranch_scc1 " + labs[2])
    blk = L("v_min_u32 v143, 36, %s" % v(vL))
    blk += L("s_mul_i32 %s, s2, 37" % s(sT2))
    blk += L("v_add_u32 v143, %s, v143" % s(sT2))
    blk += L("v_lshlrev_b32 v143, 7, v143")
    blk += L("buffer_load_dword v252, v143, %s, 0 offen" % srd(S_QKV))
    blk += L("v_min_u32 v143, 12, %s" % v(vL))
    blk += L("s_mul_i32 %s, s2, 13" % s(sT2))
    blk += L("v_add_u32 v143, %s, v143" % s(sT2))
    blk += L("v_lshlrev_b32 v143, 7, v143")
    blk += L("buffer_load_dword v252, v143, %s, 0 offen" % srd(S_WO))
    blk += L("s_branch " + done)
    o += raw(blk)
    for lab, sr in zip(labs, (S_W1, S_W3, S_W2)):
        o += L(lab + ":")
        o += raw(L("buffer_load_dword v252, v143, %s, 0 offen" % srd(sr)))
        if sr != S_W2:
            o += raw(L("s_branch " + done))
    o += L(done + ":")
    return o


def l2_prefetch_w2():
    if not OPT.l2pf:
        return []
    o = L("s_lshr_b32 %s, s2, 3" % s(sT2))
    o += L("s_mul_i32 %s, %s, 392" % (s(sT3), s(sT2)))
    o += L("s_mul_i32 %s, %s, 98" % (s(sT1), s(sW)))
    o += L("s_add_u32 %s, %s, %s" % (s(sT3), s(sT3), s(sT1)))
    o += L("v_add_u32 v255, %s, %s" % (s(sT3), v(vL)))
    o += L("v_lshlrev_b32 v255, 7, v255")
    g1 = o + [I("buffer_load_dword v252, v255, %s, 0 offen" % srd(S_W2), "pf")]
    o = L("v_min_u32 v255, 33, %s" % v(vL))
    o += L("s_add_u32 %s, %s, 64" % (s(sT3), s(sT3)))
    o += L("v_add_u32 v255, %s, v255" % s(sT3))
    o += L("v_lshlrev_b32 v255, 7, v255")
    g2 = o + [I("buffer_load_dword v252, v255, %s, 0 offen" % srd(S_W2), "pf")]
    o = L("s_mul_i32 %s, %s, 98" % (s(sT3), s(sT2)))
    o += L("s_mul_i32 %s, %s, 25" % (s(sT1), s(sW)))
    o += L("s_add_u32 %s, %s, %s" % (s(sT3), s(sT3), s(sT1)))
    o += L("v_min_u32 v255, 24, %s" % v(vL))
    o += L("v_add_u32 v255, %s, v255" % s(sT3))
    o += L("v_lshlrev_b32 v255, 7, v255")
    g3 = o + [I("buffer_load_dword v252, v255, %s, 0 offen" % srd(S_WO), "pf")]
    return [g1 + g2 + g3]


def zero_flag_publish(is_A):
    skip = label("nzf")
    o = []
    if is_A:
        o += L("s_lshl_b32 %s, %s, 1" % (s(sT1), s(sTY)))
        o += L("s_cmp_lg_u32 %s, %s" % (s(sT1), s(sM)))
        o += L("s_cbranch_scc1 " + skip)
        off = sP0
    else:
        o += L("s_cmp_lg_u32 %s, 0" % s(sTY))
        o += L("s_cbranch_scc1 " + skip)
        off = sP1_
    o += L("s_cmp_lg_u32 %s, 0" % s(sW))
    o += L("s_cbranch_scc1 " + skip)
    o += raw(L("v_mov_b32 v138, 1") + L("buffer_store_dword v138, off, %s, %s sc1" % (srd(S_DBG), s(sZK if is_A else sZH))))
    o += L(skip + ":")
    return o


sCNTE_ = 76
sZK, sZH = 86, 87
sCNTO = 88
sH0, sH1 = 89, 90
sR2 = 91
sCT = 92
sLW2 = 93


def common_roles(P):
    P("s_lshl_b32 %s, %s, 2" % (s(sZK), s(sTY)))
    P("s_lshl_b32 %s, %s, 2" % (s(sZH), s(sM)))
    P("s_add_u32 %s, %s, 32" % (s(sZH), s(sZH)))
    P("s_lshl_b32 %s, %s, 8" % (s(sCNTA), s(sTY)))
    P("s_add_u32 %s, %s, %d" % (s(sCNTA), s(sCNTA), CNT_KV))
    P("s_lshl_b32 %s, %s, 8" % (s(sCNTB), s(sM)))
    P("s_add_u32 %s, %s, %d" % (s(sCNTO), s(sCNTB), CNT_O))
    P("s_add_u32 %s, %s, %d" % (s(sCNTE_), s(sCNTB), CNT_E))
    P("s_add_u32 %s, %s, %d" % (s(sCNTB), s(sCNTB), CNT_H))
    P("s_lshl_b32 %s, %s, 2" % (s(sT1), s(sM)))
    P("s_add_u32 %s, %s, %s" % (s(sT1), s(sT1), s(sW)))
    P("s_mul_i32 %s, %s, %d" % (s(sHB0), s(sT1), 112 * 1024))
    P("s_lshl_b32 %s, %s, 15" % (s(sOB), s(sT1)))
    P("s_add_u32 %s, %s, %d" % (s(sOB), s(sOB), WS_OB))


def setup_A(P):
    P("s_mul_i32 %s, %s, 112" % (s(sT1), s(sTY)))
    P("s_mul_i32 %s, %s, %d" % (s(sB4), s(sW), 32 * RS_QKV))
    P("s_add_u32 %s, %s, %s" % (s(sB4), s(sB4), s(sT1)))
    P("s_mul_i32 %s, %s, %d" % (s(sB5), s(sW), 16 * RS_QKV))
    P("s_add_u32 %s, %s, %s" % (s(sB5), s(sB5), s(sT1)))
    P("s_lshl_b32 %s, %s, 6" % (s(sT1), s(sTY)))
    P("s_add_u32 %s, %s, 3072" % (s(sT1), s(sT1)))
    P("s_mul_i32 %s, %s, %d" % (s(sB1), s(sW), 16 * RS_FF))
    P("s_lshl_b32 %s, %s, 1" % (s(sB0), s(sB1)))
    P("s_add_u32 %s, %s, %s" % (s(sB0), s(sB0), s(sT1)))
    P("s_add_u32 %s, %s, %s" % (s(sB1), s(sB1), s(sT1)))
    P("s_lshl_b32 %s, %s, 11" % (s(sT1), s(sTY)))
    P("s_add_u32 %s, %s, %s" % (s(sHB0), s(sHB0), s(sT1)))
    P("s_add_u32 %s, %s, %d" % (s(sHB0), s(sHB0), 96 * 1024 + WS_HB))
    P("s_lshl_b32 %s, %s, 14" % (s(sKV), s(sTY)))
    P("s_add_u32 %s, %s, %s" % (s(sKV), s(sKV), s(sLW32)))
    P("s_add_u32 %s, %s, %d" % (s(sKV), s(sKV), WS_KV))
    P("s_lshl_b32 %s, %s, 12" % (s(sT1), s(sTY)))
    P("s_add_u32 %s, %s, %s" % (s(sOB), s(sOB), s(sT1)))


def setup_F(P):
    P("s_mul_i32 %s, %s, 384" % (s(sP0), s(sTY)))
    P("s_mul_i32 %s, %s, %d" % (s(sT1), s(sW), 16 * RS_FF))
    P("s_add_u32 %s, %s, %s" % (s(sB2), s(sT1), s(sP0)))
    P("s_add_u32 %s, %s, 128" % (s(sB3), s(sB2)))
    P("s_add_u32 %s, %s, 256" % (s(sB5), s(sB2)))
    P("s_add_u32 %s, %s, %s" % (s(sB4), s(sB5), s(sT1)))
    P("s_lshl_b32 %s, %s, 5" % (s(sT1), s(sP0)))
    P("s_add_u32 %s, %s, %s" % (s(sHB0), s(sHB0), s(sT1)))
    if WS_HB:
        P("s_add_u32 %s, %s, %d" % (s(sHB0), s(sHB0), WS_HB))
    P("s_add_u32 %s, %s, 4096" % (s(sHB1), s(sHB0)))
    P("s_add_u32 %s, %s, 8192" % (s(sHB2), s(sHB0)))


def wphi_dma():
    o = L("s_mul_i32 %s, %s, 3136" % (s(sT2), s(sTY)))
    o += L("s_add_u32 %s, %s, %s" % (s(sT2), s(sT2), s(sLW8)))
    return o + dma(S_PHI, vL16, sT2, 0, sLW8, L_WPHI, "wphi")


QTA = [[vT + i for i in range(16)], [vT + 8 + i for i in range(8)] + [vT + 24 + i for i in range(8)]]
QLG = [ACC_A + 32, ACC_A + 48]


def q_features(accQ):
    o = []
    for j in range(2):
        o += feature_logits(accQ[j], vT + 32 + 8 * j, QLG[j], j)
    for j in range(2):
        Pr = [QLG[j] + i for i in range(16)]
        o += exp_pm(Pr, QTA[j], vT + 16)
        o += pack_pm(Pr, QTA[j])
    return o


def check_count(vreg, cnt_s, want):
    ok, lab = label("cok"), label("cspin")
    o = L("v_readfirstlane_b32 %s, %s" % (s(sT3), v(vreg)))
    o += L("s_nop 1")
    o += L("s_cmp_eq_u32 %s, %d" % (s(sT3), want))
    o += L("s_cbranch_scc1 " + ok)
    o += raw(L("""s_mov_b32 %s, %d
%s:
buffer_load_dword %s, off, %s, %s sc1
s_waitcnt vmcnt(0)
v_readfirstlane_b32 %s, %s
s_nop 1
s_cmp_eq_u32 %s, %d
s_cbranch_scc1 %s
s_sub_u32 %s, %s, 1
s_cmp_eq_u32 %s, 0
s_cbranch_scc1 %s
s_sleep 1
s_branch %s""" % (s(sSPIN), OPT.spin_max, lab, v(vreg), srd(S_WS), s(cnt_s), s(sT3), v(vreg), s(sT3), want, ok,
                  s(sSPIN), s(sSPIN), s(sSPIN), ok, lab)))
    o += L(ok + ":")
    return o


KVR = ACC_A


def kv_loads():
    return [I("buffer_load_dword %s, %s, %s, %s offen offset:%d sc1" % (v(KVR + r), v(vL4), srd(S_WS), s(sKV), r * 256), "kvl") for r in range(16)]


def kv_publish():
    o = L("s_lshl_b32 %s, %s, 11" % (s(sT1), s(sW)))
    o += L("s_add_u32 %s, %s, %d" % (s(sT1), s(sT1), L_KVF))
    o += L("v_add_u32 v237, %s, %s" % (s(sT1), v(vL16)))
    o += L("v_mov_b32 v236, 0x3f803f80")
    for k in range(8):
        o += L("v_cvt_pk_bf16_f32 %s, %s, %s" % (v(KVR + k), v(KVR + 2 * k), v(KVR + 2 * k + 1)))
    for k in range(8):
        o += L("v_cndmask_b32 %s, %s, v236, %s" % (v(KVR + k), v(KVR + k), sD29))
    for k in (6, 7):
        o += L("v_cndmask_b32 %s, %s, 0, %s" % (v(KVR + k), v(KVR + k), sHI))
    o += L("ds_write_b128 v237, %s" % v(KVR, 4))
    o += L("ds_write_b128 v237, %s offset:1024" % v(KVR + 4, 4))
    return o


def o_calc():
    P = Prog()
    P("v_add_u32 v237, %d, %s" % (L_KVF, v(vL16)))
    for n in range(8):
        P("ds_read_b128 %s, v237 offset:%d" % (a(A_KVF + 4 * n, 4), n * 1024))
    acc = [[ACC_A, ACC_A + 16], [ACC_B, ACC_B + 16]]
    for j in range(2):
        for ft, base in ((0, QTA[j][0]), (1, QLG[j])):
            for sx in range(2):
                P("v_mfma_f32_32x32x16_bf16 %s, %s, %s, %s" % (v(acc[j][ft], 16), a(A_KVF + 16 * j + 8 * ft + 4 * sx, 4), v(base + 4 * sx, 4), "0" if sx == 0 else v(acc[j][ft], 16)))
    T = vT + 16
    for j in range(2):
        t = T + 8 * j
        src_ = [acc[j][0] + 12, acc[j][0] + 13, acc[j][1] + 12, acc[j][1] + 13]
        for k in range(4):
            P("v_mov_b32 %s, %s" % (v(t + k), v(src_[k])))
            P("v_mov_b32 %s, %s" % (v(t + 4 + k), v(src_[k])))
        for k in range(4):
            P("v_permlane32_swap_b32 %s, %s" % (v(t + k), v(t + 4 + k)))
    for j in range(2):
        t = T + 8 * j
        P("v_rcp_f32 %s, %s" % (v(t + 5), v(t + 5)))
        P("v_rcp_f32 %s, %s" % (v(t + 7), v(t + 7)))
    for j in range(2):
        t = T + 8 * j
        P("v_mul_f32 %s, %s, %s" % (v(t + 4), v(t + 4), v(t + 5)))
        P("v_fma_f32 %s, %s, %s, %s" % (v(t + 4), v(t + 6), v(t + 7), v(t + 4)))
    for j in range(2):
        t = T + 8 * j
        P("v_add_f32 %s, 0x358637bd, %s" % (v(t + 4), v(t + 4)))
    for j in range(2):
        t = T + 8 * j
        P("v_rcp_f32 %s, %s" % (v(t + 4), v(t + 4)))
    for j in range(2):
        t = T + 8 * j
        P("v_mul_f32 %s, %s, %s" % (v(t + 5), v(t + 5), v(t + 4)))
        P("v_mul_f32 %s, %s, %s" % (v(t + 7), v(t + 7), v(t + 4)))
    for j in range(2):
        t = T + 8 * j
        ap, an = acc[j]
        for i in range(16):
            P("v_mul_f32 %s, %s, %s" % (v(ap + i), v(ap + i), v(t + 5)))
        for i in range(16):
            P("v_fma_f32 %s, %s, %s, %s" % (v(ap + i), v(an + i), v(t + 7), v(ap + i)))
        for k in range(8):
            P("v_cvt_pk_bf16_f32 %s, %s, %s" % (v(ap + k), v(ap + 2 * k), v(ap + 2 * k + 1)))
        for k in (6, 7):
            P("v_cndmask_b32 %s, %s, 0, %s" % (v(ap + k), v(ap + k), sHI))
        for sx in range(2):
            P("buffer_store_dwordx4 %s, %s, %s, %s offen offset:%d sc1" % (v(ap + 4 * sx, 4), v(vL16), srd(S_WS), s(sOB), (2 * j + sx) * 1024), tag="ost")
    return P.ins


P2_ACC = 16
P2_S = 80
P2_H = 96
vD2, vDX, vWA0, vWA1, vWO, vOS, vOR = 238, 239, 240, 241, 242, 243, 248
vWA0H, vWA1H = 244, 245
vEXW, vEXR, vXD, vR2 = 224, 227, 228, 15
vR2A0, vR2A1 = 246, 247
vWO1, vSXW, vSXR = 2, 3, 4
L_EX2 = 49152
sW2B, sWOB, sXB, sOB2, sR2W = 3, 59, 93, 83, 82
sW2L, sCNTE, sHL0, sHL1 = 49, 63, 84, 85


def p2_setup():
    P = Prog()
    l = v(vL)
    P("s_sub_u32 %s, %s, 1" % (s(sCT), s(sGI)))
    P("s_max_i32 %s, %s, 0" % (s(sCT), s(sCT)))
    P("s_lshl_b32 %s, %s, 7" % (s(sCT), s(sCT)))
    P("s_lshl_b32 %s, %s, 7" % (s(sR2), s(sM)))
    P("s_lshl_b32 %s, %s, 6" % (s(sT1), s(sGH)))
    P("s_add_u32 %s, %s, %s" % (s(sR2), s(sR2), s(sT1)))
    P("v_lshrrev_b32 v220, 3, %s" % l)
    P("v_and_b32 v221, 7, %s" % l)
    P("v_mul_u32_u24 v222, %d, v220" % RS_W2)
    P("v_bfe_u32 v223, v220, 1, 1")
    P("v_lshlrev_b32 v223, 2, v223")
    P("v_xor_b32 v223, v223, v221")
    P("v_lshl_add_u32 %s, v223, 4, v222" % v(vD2))
    P("v_xor_b32 v223, v220, v221")
    P("v_lshl_add_u32 %s, v223, 4, v222" % v(vDX))
    P("v_lshl_add_u32 %s, v221, 4, v222" % v(vOS))
    P("v_lshlrev_b32 v234, 7, v220")
    P("v_lshl_add_u32 v234, v223, 4, v234")
    P("s_add_u32 %s, %s, %d" % (s(sT1), s(sLW16), L_OUTST))
    P("v_add_u32 %s, %s, v234" % (v(vOR), s(sT1)))
    P("s_mul_i32 %s, %s, %d" % (s(sW2B), s(sW), 24 * 16 * RS_W2))
    P("s_add_u32 %s, %s, %s" % (s(sW2B), s(sW2B), s(sCT)))
    P("s_mul_i32 %s, %s, %d" % (s(sW2L), s(sW), 4 * 16 * RS_W2))
    P("s_add_u32 %s, %s, %s" % (s(sW2L), s(sW2L), s(sCT)))
    P("s_mul_i32 %s, %s, %d" % (s(sWOB), s(sW), 8 * RS_W2))
    P("s_add_u32 %s, %s, %s" % (s(sWOB), s(sWOB), s(sCT)))
    P("s_lshl_b32 %s, %s, 4" % (s(sT1), s(sW)))
    P("s_add_u32 %s, %s, %s" % (s(sT1), s(sT1), s(sR2)))
    P("s_mul_i32 %s, %s, %d" % (s(sXB), s(sT1), RS_X))
    P("s_add_u32 %s, %s, %s" % (s(sXB), s(sXB), s(sCT)))
    P("v_lshrrev_b32 v220, 5, %s" % l)
    P("v_bfe_u32 v221, %s, 2, 2" % l)
    P("v_lshl_or_b32 v220, v220, 2, v221")
    P("v_lshlrev_b32 v220, 7, v220")
    P("v_bfe_u32 v221, %s, 4, 1" % l)
    P("v_lshl_add_u32 v220, v221, 5, v220")
    P("v_and_b32 v221, 3, %s" % l)
    P("v_lshl_add_u32 v220, v221, 3, v220")
    P("v_bfe_u32 v221, %s, 3, 1" % l)
    P("s_and_b32 %s, %s, 1" % (s(sT1), s(sW)))
    P("v_xor_b32 v221, %s, v221" % s(sT1))
    P("v_lshl_add_u32 v222, v221, 6, v220")
    P("v_add_u32 %s, %s, v222" % (v(vWA0), s(sLW32)))
    P("s_mul_i32 %s, %s, %d" % (s(sT2), s(sT1), 8 * 28 * 128))
    P("s_add_u32 %s, %s, %d" % (s(sT2), s(sT2), L_WO))
    P("v_add_u32 %s, %s, v222" % (v(vWO), s(sT2)))
    P("v_xor_b32 v221, 1, v221")
    P("v_lshl_add_u32 v222, v221, 6, v220")
    P("v_add_u32 %s, %s, v222" % (v(vWA1), s(sLW32)))
    P("v_add_u32 %s, 0x4000, %s" % (v(vWA0H), v(vWA0)))
    P("v_add_u32 %s, 0x4000, %s" % (v(vWA1H), v(vWA1)))
    P("s_mul_i32 %s, %s, %d" % (s(sR2W), s(sW), 14336))
    P("s_add_u32 %s, %s, %d" % (s(sR2W), s(sR2W), L_R2))
    P("s_sub_u32 %s, %s, %s" % (s(sT1), s(sR2W), s(sLW32)))
    P("v_add_u32 %s, %s, %s" % (v(vR2A0), s(sT1), v(vWA0)))
    P("v_add_u32 %s, %s, %s" % (v(vR2A1), s(sT1), v(vWA1)))
    P("s_lshr_b32 %s, %s, 1" % (s(sT1), s(sW)))
    P("s_lshl_b32 %s, %s, 2" % (s(sT2), s(sM)))
    P("s_lshl_b32 %s, %s, 1" % (s(sT3), s(sGH)))
    P("s_add_u32 %s, %s, %s" % (s(sT2), s(sT2), s(sT3)))
    P("s_add_u32 %s, %s, %s" % (s(sT3), s(sT2), s(sT1)))
    P("s_mul_i32 %s, %s, %d" % (s(sH0), s(sT3), 112 * 1024))
    P("s_lshl_b32 %s, %s, 15" % (s(sOB2), s(sT3)))
    P("s_add_u32 %s, %s, %d" % (s(sOB2), s(sOB2), WS_OB))
    P("s_and_b32 %s, %s, 1" % (s(sP0), s(sW)))
    P("s_lshl_b32 %s, %s, 14" % (s(sP0), s(sP0)))
    P("s_add_u32 %s, %s, %s" % (s(sOB2), s(sOB2), s(sP0)))
    P("s_xor_b32 %s, %s, 1" % (s(sT1), s(sT1)))
    P("s_add_u32 %s, %s, %s" % (s(sT3), s(sT2), s(sT1)))
    P("s_mul_i32 %s, %s, %d" % (s(sH1), s(sT3), 112 * 1024))
    P("s_lshl_b32 %s, %s, 12" % (s(sT1), s(sW)))
    P("s_add_u32 %s, %s, %s" % (s(sHL0), s(sH0), s(sT1)))
    P("s_add_u32 %s, %s, %s" % (s(sHL1), s(sH1), s(sT1)))
    P("s_mul_i32 %s, %s, %d" % (s(sT1), s(sW), 24 * 1024))
    P("s_add_u32 %s, %s, %s" % (s(sH0), s(sH0), s(sT1)))
    P("s_add_u32 %s, %s, %s" % (s(sH1), s(sH1), s(sT1)))
    for d in range(1, 4):
        P("s_xor_b32 %s, %s, %d" % (s(sT1), s(sW), d))
        P("s_mul_i32 %s, %s, %d" % (s(sT1), s(sT1), 3 * 4096))
        P("s_add_u32 %s, %s, %d" % (s(sT1), s(sT1), L_EX + (d - 1) * 4096))
        P("v_add_u32 %s, %s, %s" % (v(vEXW + d - 1), s(sT1), v(vL16)))
    P("s_mul_i32 %s, %s, %d" % (s(sT1), s(sW), 3 * 4096))
    P("s_add_u32 %s, %s, %d" % (s(sT1), s(sT1), L_EX))
    P("v_add_u32 %s, %s, %s" % (v(vEXR), s(sT1), v(vL16)))
    P("v_and_b32 v220, 31, %s" % l)
    P("s_lshr_b32 %s, %s, 1" % (s(sT1), s(sW)))
    P("s_lshl_b32 %s, %s, 5" % (s(sT1), s(sT1)))
    P("v_add_u32 v221, %s, v220" % s(sT1))
    P("v_lshlrev_b32 v222, 7, v221")
    P("s_and_b32 %s, %s, 1" % (s(sT2), s(sW)))
    P("s_lshl_b32 %s, %s, 2" % (s(sT2), s(sT2)))
    P("v_and_b32 v223, 7, v220")
    P("v_xor_b32 v223, %s, v223" % s(sT2))
    P("v_lshl_add_u32 v222, v223, 4, v222")
    P("v_lshrrev_b32 v223, 5, %s" % l)
    P("v_lshl_add_u32 v222, v223, 3, v222")
    P("v_add_u32 v222, %d, v222" % L_OUTST)
    for rq in range(4):
        P("v_xor_b32 %s, %d, v222" % (v(vXD + rq), 16 * rq))
    P("s_lshl_b32 %s, %s, 8" % (s(sT1), s(sGH)))
    P("s_add_u32 %s, %s, %d" % (s(sT1), s(sT1), L_RSTAT))
    P("v_lshlrev_b32 v221, 2, v221")
    P("v_add_u32 %s, %s, v221" % (v(vR2), s(sT1)))
    P("s_mov_b32 s80, 0x20000000")
    P("s_mov_b32 s81, 0x20000000")
    return P.ins


def p2_r2():
    return L("ds_read_b32 %s, %s" % (v(vR2), v(vR2))) + L("v_mul_f32 %s, %s, %s" % (v(vR2), v(vR2), v(vR2)))


def wo_dma():
    o = [dma(S_WO, vD2, sWOB, 32 * u * RS_W2, sLW8, L_WO + 4096 * u, "wo") for u in range(14)]
    g = L("s_add_u32 %s, %s, %d" % (s(sT1), s(sCT), 448 * RS_W2))
    o.append(g + dma(S_WO, vD2, sT1, 0, None, L_WO + 57344, "wo"))
    return o


def xt_dma():
    return [dma(S_X, vDX, sXB, 8 * i * RS_X, sLW16, L_XT + 1024 * i, "xt") for i in range(2)]


class W2Stage:
    U_STEPS = {0: (7, 8), 1: (9, 10), 2: (11, 12), 3: (13, 14), 4: (15, 16), 5: (24, 25), 6: (26, 27)}

    def __init__(self, n_p1):
        self.n = n_p1

    def slot(self, u):
        return SLOT * ((self.n + u) % NSLOT)

    def dma(self, u):
        o = []
        for h, jj in enumerate(self.U_STEPS[u]):
            for i in range(2):
                o.append(w2_step_dma(jj, i, sLW32, self.slot(u) + h * 2048 + 1024 * i, "w2_%d" % u))
        return o

    def reads(self, u):
        o = []
        for h, jj in enumerate(self.U_STEPS[u]):
            for c, (lo, hi) in enumerate(((vWA0, vWA0H), (vWA1, vWA1H))):
                for q in range(2):
                    off = self.slot(u) + h * 2048 + 1024 * q
                    reg = lo
                    if off > 65535 - 1024:
                        reg, off = hi, off - 16384
                    o.append(I("ds_read_b64_tr_b16 %s, %s offset:%d" % (a(W2F(jj) + 4 * c + 2 * q, 2), v(reg), off), "w2r_%d" % u))
        return o

    def r2_dma(self, fill):
        o = []
        for st in range(7):
            jj = st if fill == 0 else 17 + st
            for i in range(2):
                o.append(w2_step_dma(jj, i, sR2W, st * 2048 + 1024 * i, "r2_%d" % fill))
        return o

    def r2_reads(self, fill):
        o = []
        for st in range(7):
            jj = st if fill == 0 else 17 + st
            for c, reg in enumerate((vR2A0, vR2A1)):
                for q in range(2):
                    o.append(I("ds_read_b64_tr_b16 %s, %s offset:%d" % (a(W2F(jj) + 4 * c + 2 * q, 2), v(reg), st * 2048 + 1024 * q), "r2r_%d" % fill))
        return o

    def early_reads(self):
        o = [L("@waitvm r2_0 w2_0 w2_1 w2_2")]
        o += G(self.r2_reads(0)) + G(self.reads(0)) + G(self.reads(1)) + G(self.reads(2))
        return o

    def refill_a(self):
        return [L("@waitlgkm r2r_0")] + self.r2_dma(1)

    def refill_b(self):
        return [L("@waitlgkm w2r_0 w2r_1")] + self.dma(5) + self.dma(6)

    def late_reads(self):
        o = L("@waitvm w2_3 w2_4") + self.reads(3) + self.reads(4)
        o += L("@waitvm r2_1") + self.r2_reads(1)
        o += L("@waitvm w2_5 w2_6") + self.reads(5) + self.reads(6)
        return o


def W2F(jj):
    return 8 * jj


def step_ft(jj):
    if jj < 16:
        return False, 12 * (jj >> 3) + (jj & 7)
    if jj < 24:
        return False, 12 * ((jj - 16) >> 2) + 8 + ((jj - 16) & 3)
    return True, 96 + (jj - 24)


def w2_step_dma(jj, i, ldsbase, ldsoff, tag):
    late, ft = step_ft(jj)
    return dma(S_W2, vD2, sW2L if late else sW2B, (16 * ft + 8 * i) * RS_W2, ldsbase, ldsoff, tag)


def ln_vm(chs, extra0, extra3):
    d = [chunk_dma(c) for c in chs]
    return [extra0 + d[0], d[1] + d[2], d[3] + d[4] + [code_prefetch()], extra3]


def open_program(P, setups):
    Q = Prog()
    common_setup(Q)
    for f in setups:
        f(Q)
    P.ext(flat(merge(x_loads(), G(Q.ins))))
    stamp(P, 11)


W2_RING = 2


def program_A(P):
    RING_OFF[0] = 1
    gK = Group("k", [0, 1], [ACC_A, ACC_A + 16], vTA)
    gV = Group("v", [0, 1], [ACC_A + 32, ACC_A + 48], vTA)
    gQ = Group("q", [0, 1], [ACC_A, ACC_A + 16], vTA)
    gH = Group("hA", [0, 1], [ACC_B, ACC_B + 16], vTA + 8)
    groups = [gK, gV, gQ, gH]
    open_program(P, [common_roles, setup_A, ln_addr_setup, lambda Q: tile_addr_setup(Q, "att", vTA),
                     lambda Q: tile_addr_setup(Q, "h", vTA + 8), lambda Q: Q.ext(wphi_addr()),
                     lambda Q: Q.ext(exch_addr_setup()), lambda Q: Q.ext(p2_setup())])
    stamp(P, 0)
    chs = group_chunks(groups)
    layernorm(P, ln_vm(chs, [zero_init(True), wphi_dma()], [warmup()]))
    stamp(P, 1)
    w2 = W2Stage(len(chs) + RING_OFF[0])
    assert w2.n % NSLOT == W2_RING
    f_k = G(k_epilogue([ACC_A, ACC_A + 16], [ACC_B, ACC_B + 16]))
    flagload = [L("buffer_load_dword %s, off, %s, %s sc1" % (v(vFZ1), srd(S_DBG), s(sZK))),
                L("buffer_load_dword %s, off, %s, %s sc1" % (v(vFZ0), srd(S_DBG), s(sZH)))]
    f_v = G(v_epilogue([ACC_A + 32, ACC_A + 48]))
    f_kv = G(kv_tile(ACC_A + 32)) + [check_flag(vFZ1, sZK)] + G(kv_atomics(ACC_A + 32))
    f_q = G(q_features([ACC_A, ACC_A + 16]))
    cV, cQ, cH = 4, 8, 12
    fillers = [(0, 0, 24, G(ln_stage_b())),
               (0, 24, 56, G(wphi_frags()) + G(p2_r2())),
               (1, 1, 56, f_k + flagload),
               (2, 1, 26, f_v),
               (2, 29, 54, f_kv),
               (2, 26, 28, l2_prefetch_w2()),
               (3, 14, 56, w2.r2_dma(0) + xt_dma()),
               (3, 1, 56, f_q)]
    bar_pre = {cQ + 2: L("@waitlgkm phiw"), cH + 2: L("@waitvm kvat")}
    bar_post = {0: zero_flag_publish(True), cH + 2: signal(sCNTA)}
    chunks, pre, body = build_p1_stream(groups, fillers, bar_pre, bar_post, tail=[w2.dma(u) for u in range(3)])
    P("@waitvm wphi")
    P.ext(pre)
    P.ext(body)
    stamp(P, 2)
    P("s_barrier")
    e0 = G(ffn_epilogue(ACC_B, vT + 24, sHB0, 0))
    e1 = G(ffn_epilogue(ACC_B + 16, vT + 16, sHB0, 1024))
    P.ext(flat(merge(e0, e1)))
    P("buffer_load_dword %s, off, %s, %s sc1" % (v(vFZ1), srd(S_WS), s(sCNTA)))
    P.ext(flat(merge(w2.early_reads(), w2.dma(3) + w2.dma(4))))
    P.ext(check_count(vFZ1, sCNTA, 16))
    P.ext(kv_loads())
    P("buffer_load_dword %s, off, %s, %s sc1" % (v(vFE), srd(S_WS), s(sCNTE_)))
    P.ext(kv_publish())
    P("@waitvm hst")
    P("@waitlgkm_all")
    P("s_barrier")
    P.ext(check_flag(vFZ0, sZH))
    P.ext(signal(sCNTB))
    stamp(P, 3)
    P.ext(o_calc())
    go = label("go")
    P("s_cmp_lg_u32 %s, 0" % s(sGI))
    P("s_cbranch_scc1 " + go)
    P.ext(raw(L("s_waitcnt vmcnt(0)") + L("s_barrier")) + signal(sCNTO))
    if OPT.stamps:
        keep = PEND[0]
        Pq = Prog(); stamp(Pq, 9, final=True); P.ext(raw([x for x in Pq.ins if x.kind != "pseudo"])); PEND[0] = keep
    P("s_branch L_exit")
    P(go + ":")
    P.ext(check_count(vFE, sCNTE_, 8))
    stamp(P, 4)
    P("s_branch L_phase2")


def program_F(P):
    RING_OFF[0] = 0
    gU0 = Group("ffA", [0, 1, 2, 3], [ACC_A + 16 * t for t in range(4)], vTA)
    gU1 = Group("ffB", [0, 1, 2, 3], [ACC_B + 16 * t for t in range(4)], vTA)
    gHa = Group("hF0", [0, 1], [ACC_A, ACC_A + 16], vTA + 8)
    gHb = Group("hF1", [0, 1], [ACC_A + 32, ACC_A + 48], vTA + 8)
    groups = [gU0, gU1, gHa, gHb]
    open_program(P, [common_roles, setup_F, ln_addr_setup, lambda Q: tile_addr_setup(Q, "ff", vTA),
                     lambda Q: tile_addr_setup(Q, "h", vTA + 8), lambda Q: Q.ext(p2_setup())])
    stamp(P, 0)
    chs = group_chunks(groups)
    layernorm(P, ln_vm(chs, [zero_init(False)], [warmup()]))
    stamp(P, 1)
    w2 = W2Stage(len(chs) + RING_OFF[0])
    assert w2.n % NSLOT == W2_RING
    f0, f1, fa = [], [], []
    for t in range(4):
        f0 += G(ffn_epilogue(ACC_A + 16 * t, vT + 24, sHB0, t * 1024))
        f1 += G(ffn_epilogue(ACC_B + 16 * t, vT + 24, sHB1, t * 1024, "hst_e"))
    for t in range(2):
        fa += G(ffn_epilogue(ACC_A + 16 * t, vT + 24, sHB2, t * 1024))
    flagload = [L("buffer_load_dword %s, off, %s, %s sc1" % (v(vFZ0), srd(S_DBG), s(sZH)))]
    cHa, cHb = 14, 18
    fillers = [(0, 0, 44, G(ln_stage_b())),
               (0, 62, 112, G(p2_r2()) + w2.r2_dma(0) + xt_dma()),
               (1, 2, 110, f0 + flagload),
               (1, 100, 104, l2_prefetch_w2()),
               (2, 1, 56, f1),
               (3, 2, 54, fa)]
    bar_pre = {cHb + 3: L("@waitvm hst_e")}
    bar_post = {0: zero_flag_publish(False), cHb + 3: check_flag(vFZ0, sZH) + signal(sCNTE_)}
    chunks, pre, body = build_p1_stream(groups, fillers, bar_pre, bar_post, tail=[w2.dma(u) for u in range(3)])
    P.ext(pre)
    P.ext(body)
    stamp(P, 2)
    P("s_barrier")
    e0 = G(ffn_epilogue(ACC_A + 32, vT + 24, sHB2, 2048))
    e1 = G(ffn_epilogue(ACC_A + 48, vT + 32, sHB2, 3072))
    P.ext(flat(merge(e0, e1)))
    P.ext(flat(merge(w2.early_reads(), w2.dma(3) + w2.dma(4))))
    P("buffer_load_dword %s, off, %s, %s sc1" % (v(vFE), srd(S_WS), s(sCNTE_)))
    P("@waitvm hst")
    P("s_barrier")
    P.ext(signal(sCNTB))
    stamp(P, 3)
    P.ext(check_count(vFE, sCNTE_, 8))
    stamp(P, 4)


def phase2(P):
    P("L_phase2:")
    P("@flush")
    P("s_waitcnt lgkmcnt(0)")
    w2 = W2Stage(W2_RING)
    P("v_xor_b32 %s, 64, %s" % (v(vWO1), v(vWO)))
    P("s_xor_b32 %s, %s, 1" % (s(sT1), s(sW)))
    P("s_lshl_b32 %s, %s, 12" % (s(sT1), s(sT1)))
    P("s_add_u32 %s, %s, %d" % (s(sT1), s(sT1), L_EX2))
    P("v_add_u32 %s, %s, %s" % (v(vSXW), s(sT1), v(vL16)))
    P("s_add_u32 %s, %s, %d" % (s(sT1), s(sLW32), L_EX2))
    P("v_add_u32 %s, %s, %s" % (v(vSXR), s(sT1), v(vL16)))
    stamp(P, 6)
    items = [(jj, aa) for jj in range(28) for aa in range(2)]
    NB = 32
    nI = len(items)

    def hload(n):
        jj, aa = items[n]
        late, ft = step_ft(jj)
        sb = (sHL0 if aa == 0 else sHL1) if late else (sH0 if aa == 0 else sH1)
        o = L("s_add_u32 %s, %s, %d" % (s(sSOFF), s(sb), ft * 1024))
        o += [I("buffer_load_dwordx4 %s, %s, %s, %s offen sc1" % (v(P2_H + 4 * (n % NB), 4), v(vL16), srd(S_WS), s(sSOFF)), "h")]
        return o

    def oload(kk):
        o = []
        if kk % 4 == 0 and kk > 0:
            o += L("s_add_u32 %s, %s, 4096" % (s(sOB2), s(sOB2)))
        n = nI + kk
        o += [I("buffer_load_dwordx4 %s, %s, %s, %s offen offset:%d sc1" % (v(P2_H + 4 * (n % NB), 4), v(vL16), srd(S_WS), s(sOB2), (kk % 4) * 1024), "o")]
        return o
    for n in range(NB):
        P.ext(hload(n))
    P.ext(flat(w2.r2_dma(1) + w2.dma(5) + w2.dma(6)))
    P("buffer_load_dword %s, off, %s, %s sc1" % (v(vFZ0), srd(S_WS), s(sCNTB)))
    pend = []
    for n, (jj, aa) in enumerate(items):
        for c in range(2):
            acc = P2_ACC + 16 * (2 * aa + c)
            P("v_mfma_f32_32x32x16_bf16 %s, %s, %s, %s" % (v(acc, 16), a(W2F(jj) + 4 * c, 4), v(P2_H + 4 * (n % NB), 4), "0" if jj == 0 else v(acc, 16)))
            if pend and n >= 23:
                P.ext(pend.pop(0))
        if n == 0:
            P.ext(w2.reads(3) + w2.reads(4))
        if n == 1:
            na = label("notA")
            P("s_cmp_ge_u32 %s, 4" % s(sGI))
            P("s_cbranch_scc1 " + na)
            P.ext(raw(L("s_barrier")) + signal(sCNTO))
            P(na + ":")
        if n == 22:
            P.ext(check_count(vFZ0, sCNTB, 16))
            pend += [hload(m) for m in range(NB, NB + 23)]
            P("buffer_load_dword %s, off, %s, %s sc1" % (v(vFZ1), srd(S_WS), s(sCNTO)))
        elif n == 23:
            pend.append(hload(NB + 23))
        elif 24 <= n < 40:
            kk = n - 24
            pend.append((check_count(vFZ1, sCNTO, 8) if kk == 0 else []) + oload(kk))
        if n == 31:
            P("@waitvm r2_1")
            P.ext(w2.r2_reads(1))
            P("@waitvm w2_5 w2_6")
            P.ext(w2.reads(5) + w2.reads(6))
        if n == 34:
            P("@waitlgkm r2r_1")
            P("s_barrier")
            pend = wo_dma() + pend
    P.ext(flat(pend))
    stamp(P, 7)
    P("@waitvm wo")
    P("s_barrier")
    for d in range(1, 4):
        acc = P2_ACC + 16 * d
        for q in range(4):
            P("ds_write_b128 %s, %s offset:%d" % (v(vEXW + d - 1), v(acc + 4 * q, 4), q * 1024))

    SA = [P2_S, P2_H + 32]
    sl = [(kk, c) for kk in range(16) for c in range(2)]

    def wo_reads(m):
        kk, c = sl[m]
        h, sx = kk // 2, kk % 2
        buf = 4 * (m % 8)
        return [I("ds_read_b64_tr_b16 %s, %s offset:%d" % (a(buf + 2 * q, 2), v(vWO1 if c else vWO), (28 * h + 16 * sx + 8 * q) * 128)) for q in range(2)]

    def smfma(m):
        kk, c = sl[m]
        n = nI + kk
        return L("v_mfma_f32_32x32x16_bf16 %s, %s, %s, %s" % (v(SA[c], 16), a(4 * (m % 8), 4), v(P2_H + 4 * (n % NB), 4), "0" if kk == 0 else v(SA[c], 16)))
    for m in range(4):
        P.ext(wo_reads(m))
    adds = []
    for d in range(1, 4):
        for i in range(16):
            adds.append(I("v_add_f32 %s, %s, %s" % (v(P2_ACC + i), v(P2_ACC + i), v(P2_ACC + 16 * d + i))))
    for m in range(32):
        P.ext(smfma(m))
        if m + 4 < 32:
            P.ext(wo_reads(m + 4))
        if m == 3:
            P("@waitlgkm_all")
            P("s_barrier")
            for d in range(1, 4):
                acc = P2_ACC + 16 * d
                for q in range(4):
                    P("ds_read_b128 %s, %s offset:%d" % (v(acc + 4 * q, 4), v(vEXR), (d - 1) * 4096 + q * 1024))
        if m >= 8:
            P.ext(adds[:2])
            adds = adds[2:]
    P.ext(adds)
    B, S_, T = P2_ACC, P2_S, P2_H + 64
    X = P2_H + 48
    for q in range(4):
        P("ds_write_b128 %s, %s offset:%d" % (v(vSXW), v(SA[1] + 4 * q, 4), q * 1024))
    for rq in range(4):
        P("ds_read_b64 %s, %s offset:%d" % (v(X + 2 * rq, 2), v(vXD + rq), L_XT - L_OUTST))
    for i in range(16):
        P("v_mul_f32 %s, %s, %s" % (v(B + i), v(B + i), v(vR2)))
    P("@waitlgkm_all")
    P("s_barrier")
    for q in range(4):
        P("ds_read_b128 %s, %s offset:%d" % (v(SA[1] + 4 * q, 4), v(vSXR), q * 1024))
    for i in range(16):
        P("v_mul_f32 %s, 0x%x, %s" % (v(T + i), NLOG2E, v(B + i)))
    for i in range(16):
        P("v_exp_f32 %s, %s" % (v(T + i), v(T + i)))
    for i in range(16):
        P("v_add_f32 %s, %s, %s" % (v(S_ + i), v(S_ + i), v(SA[1] + i)))
    stamp(P, 8)
    for i in range(16):
        P("v_add_f32 %s, 1.0, %s" % (v(T + i), v(T + i)))
    for i in range(16):
        P("v_mul_f32 %s, %s, %s" % (v(B + i), v(B + i), v(S_ + i)))
    for i in range(16):
        P("v_rcp_f32 %s, %s" % (v(T + i), v(T + i)))
    U = T + 16
    for k in range(8):
        P("v_lshlrev_b32 %s, 16, %s" % (v(U + 2 * k), v(X + k)))
        P("v_and_b32 %s, 0xffff0000, %s" % (v(U + 2 * k + 1), v(X + k)))
    for i in range(16):
        P("v_fma_f32 %s, %s, %s, %s" % (v(B + i), v(B + i), v(T + i), v(U + i)))
    for k in range(8):
        P("v_cvt_pk_bf16_f32 %s, %s, %s" % (v(B + k), v(B + 2 * k), v(B + 2 * k + 1)))
    for rq in range(4):
        P("ds_write_b64 %s, %s" % (v(vXD + rq), v(B + 2 * rq, 2)))
    P("@waitlgkm_all")
    P("s_barrier")
    for i in range(2):
        P("ds_read_b128 %s, %s offset:%d" % (v(T + 4 * i, 4), v(vOR), 1024 * i))
    for i in range(2):
        if i:
            P("s_add_u32 %s, %s, %d" % (s(sXB), s(sXB), 8 * RS_X))
        P("buffer_store_dwordx4 %s, %s, %s, %s offen" % (v(T + 4 * i, 4), v(vOS), srd(S_OUT), s(sXB)))
    stamp(P, 9, final=True)


def finish(P):
    ins = resolve_waits(P.ins)
    ins, nn = pad_hazards(ins)
    return ins, nn


def build():
    uid[0] = 0
    head = Prog()
    prologue(head)
    head("s_cmp_ge_u32 %s, 4" % s(sGI))
    head("s_cbranch_scc1 L_typeF")
    pend = PEND[0]
    PA = Prog(); PA.ext(head.ins); program_A(PA)
    PEND[0] = pend
    PF = Prog(); PF.ext(head.ins); program_F(PF)
    PEND[0] = 4
    insA, nA = finish(PA)
    insF, nF = finish(PF)
    def cut(ins):
        for k, x in enumerate(ins):
            if x.text == "s_cbranch_scc1 L_typeF":
                return k + 1
    ka, kf = cut(insA), cut(insF)
    assert [x.text for x in insA[:ka]] == [x.text for x in insF[:kf]]
    P2 = Prog()
    if OPT.stop_after == "p1":
        P2("L_phase2:")
        P2("s_waitcnt vmcnt(0) lgkmcnt(0)")
        stamp(P2, 9, final=True)
    else:
        phase2(P2)
    ins2, n2 = finish(P2)
    text = render(insA) + "\nL_typeF:\n" + render(insF[kf:]) + "\n" + render(ins2) + "\nL_exit:\n    s_endpgm\n"
    stats = dict(nA=len(insA), nF=len(insF), n2=len(ins2), nopA=nA, nopF=nF, nop2=n2)
    return text, stats


HEADER = """; Kernarg layout for this problem (88 bytes, ptrs only, base s[0:1]):
; One persistent launch, 256 workgroups (one per CU): phase 1 = LayerNorm + q/k/v + gate/up GEMMs with the
; @launch grid=(256,1,1) block=(256,1,1) lds=%d
.amdgcn_target "amdgcn-amd-amdhsa--gfx950"
.text
.globl %s
.p2align 8
.type %s,@function
%s:
"""
FOOTER = """
.section .rodata,"a"
.p2align 6
.amdhsa_kernel %s
  .amdhsa_next_free_vgpr 512
  .amdhsa_next_free_sgpr 102
  .amdhsa_accum_offset 256
  .amdhsa_group_segment_fixed_size 0
  .amdhsa_kernarg_size 88
  .amdhsa_user_sgpr_count 2
  .amdhsa_user_sgpr_kernarg_segment_ptr 1
  .amdhsa_system_sgpr_workgroup_id_x 1
.end_amdhsa_kernel
"""


def generate(path):
    text, stats = build()
    out = HEADER % (LDS_SIZE, NAME, NAME, NAME) + text + FOOTER % NAME
    open(path, "w").write(out)
    return stats


if __name__ == "__main__":
    import argparse
    ap = argparse.ArgumentParser()
    ap.add_argument("-o", default="out.s")
    ap.add_argument("--stamps", action="store_true")
    ap.add_argument("--stop", default=None)
    ap.add_argument("--hot", action="store_true")
    ap.add_argument("--exp", default="")
    a_ = ap.parse_args()
    OPT.stamps = a_.stamps
    OPT.stop_after = a_.stop
    OPT.hot_w = a_.hot
    if "nol2pf" in a_.exp:
        OPT.l2pf = False
    for e in a_.exp.split(","):
        if e:
            setattr(OPT, e, True)
    print(generate(a_.o))
```

```python
import sys, os
sys.path.insert(0, os.path.dirname(os.path.abspath(__file__)))
from asmlib import I, Inst, resolve_waits, pad_hazards, render

NAME = "recurrent_scan__linear_kernel_hedgehog__glu_gated_swiglu__prompt_kernel"

class Opt:
    stamps = False
    stop_after = None
    spin_max = 1 << 17
    prefetch_code = True
    cyc = False
    dbgst = 0
    l2pf = False
    nol2pf = False
    chunkst = False
    cs0 = 1
    pair_wait = True
    dma_gap = 3
    no_dma = False
    no_bar = False
    no_reads = False
    no_fill = False
    hot_w = False
OPT = Opt()

LOG2E = 0x3FB8AA3B
NLOG2E = 0xBFB8AA3B
RS_X, RS_QKV, RS_FF, RS_W2 = 896, 2688, 3584, 896
WS_HB = 0
WS_OB = WS_HB + 16 * 4 * 112 * 1024
WS_KV = WS_OB + 16 * 4 * 32 * 1024
WS_CNT = WS_KV + 16 * 8192
CNT_KV, CNT_H, CNT_O, CNT_E = WS_CNT, WS_CNT + 2048, WS_CNT + 2048 + 4096, WS_CNT + 2048 + 8192
WS_TS = WS_CNT + 16384
WS_SIZE = WS_TS + 256 * 4 * 128
SLOT = 16384
NSLOT = 5
L_XST = 81920
XST_W = 16896
XROW = 528
L_PHI = 81920
L_V = L_PHI + 32768
L_WPHI = 149504
L_RSTAT = 163328
L_R2 = 81920
L_WO = 81920
L_KVF = 140288
L_XT = 148480
L_EX = 0
L_OUTST = 140288
LDS_SIZE = 163840

S_X, S_QKV, S_PHI, S_WO, S_W1, S_W3, S_W2, S_OUT, S_DBG, S_WS = 4, 8, 12, 16, 20, 24, 28, 32, 36, 40
def srd(b): return "s[%d:%d]" % (b, b + 3)
sW, sM, sGI, sGH, sTY = 44, 45, 46, 47, 48
sT0, sT1, sT2, sT3 = 49, 50, 51, 52
sONES, sE0, sE1 = 53, 54, 55
sLW16, sLW32, sLW8 = 56, 57, 58
sB0, sB1, sB2, sB3, sB4, sB5 = 62, 63, 64, 65, 66, 67
sHB0, sHB1, sHB2 = 68, 69, 70
sSOFF = 71
sKV, sOB, sCNTA, sCNTB = 72, 73, 74, 75
sSPIN = 91
sHI = "s[60:61]"
sTS = 78
sTSB = 77
sP0, sP1_, sP2_, sP3 = 80, 81, 82, 83
sRB = 94
sXO = 98
sD29 = "s[80:81]"

vTID, vL = 0, 1
ACC_A, ACC_B = 16, 80
def XR(p, j): return 16 + (j * 4 + p) * 4
vT = 144
vDQ, vDG, vDU, vDG64, vDU64 = 2, 3, 4, 5, 6
vR, vC1, vCS, vMASKF = 7, 8, 9, 10
vL16 = 11
vL4 = 12
vFZ0, vFZ1 = 13, 14
vTA = 192
vXA = 208
vKA = 216
vXW = 132
vLW, vLRW, vLF, vLRR, vLT, vXO = 128, 129, 130, 131, 136, 141
vZ = 137
vVF, vONE = 232, 234
vMISC = 220
A_X = 0
A_WB = 112
A_PHI = 144
A_KVF = 160


def v(i, n=1): return "v%d" % i if n == 1 else "v[%d:%d]" % (i, i + n - 1)
def a(i, n=1): return "a%d" % i if n == 1 else "a[%d:%d]" % (i, i + n - 1)
def s(i, n=1): return "s%d" % i if n == 1 else "s[%d:%d]" % (i, i + n - 1)


class Prog:
    def __init__(self):
        self.ins = []
    def __call__(self, text, tag=None, **meta):
        for line in text.strip().split("\n"):
            line = line.strip()
            if line:
                self.ins.append(I(line, tag, **meta))
        return self
    def ext(self, lst):
        for x in lst:
            if isinstance(x, (list, tuple)):
                self.ext(x)
            else:
                self.ins.append(x)


def L(text, tag=None):
    return [I(x.strip(), tag) for x in text.strip().split("\n") if x.strip()]


def stamp(P, idx, final=False):
    if not OPT.stamps:
        return
    P("s_waitcnt lgkmcnt(0)")
    P("@flushlg")
    P("v_writelane_b32 v249, %s, %d" % (s(sTS), PEND[0]))
    P("%s %s" % ("s_memtime" if OPT.cyc else "s_memrealtime", s(sTS, 2)))
    keep = PEND[0]
    PEND[0] = idx
    if final:
        P("s_waitcnt lgkmcnt(0)")
        P("@flushlg")
        P("v_writelane_b32 v249, %s, %d" % (s(sTS), idx))
        P("v_lshlrev_b32 v250, 2, %s" % v(vL))
        P("s_mov_b64 exec, 0xffffffff")
        P("buffer_store_dword v249, v250, %s, %s offen" % (srd(S_WS), s(sTSB)))
        if OPT.dbgst:
            sk = label("dbgst")
            P("s_cmp_lg_u32 s2, %d" % OPT.dbgst)
            P("s_cbranch_scc1 " + sk)
            P("s_cmp_lg_u32 %s, 0" % s(sW))
            P("s_cbranch_scc1 " + sk)
            P("s_mov_b64 exec, 0xffff")
            P("buffer_store_dword v249, v250, %s, 0 offen" % srd(S_DBG))
            P(sk + ":")
        P("s_mov_b64 exec, -1")


uid = [0]
PEND = [15]
def label(base):
    uid[0] += 1
    return "L_%s_%d" % (base, uid[0])


def spin_until(P, load_text, want, shift_mask=None):
    lab, done = label("spin"), label("spun")
    P("@waitvm_all")
    P("s_mov_b32 %s, %d" % (s(sSPIN), OPT.spin_max))
    P(lab + ":")
    P(load_text)
    P("s_waitcnt vmcnt(0)")
    P("@flushvm")
    P("v_readfirstlane_b32 %s, v254" % s(sT3))
    P("s_nop 1")
    P("s_cmp_eq_u32 %s, %d" % (s(sT3), want))
    P("s_cbranch_scc1 " + done)
    P("s_sub_u32 %s, %s, 1" % (s(sSPIN), s(sSPIN)))
    P("s_cmp_eq_u32 %s, 0" % s(sSPIN))
    P("s_cbranch_scc1 " + done)
    P("s_sleep 1")
    P("s_branch " + lab)
    P(done + ":")


def prologue(P):
    P("s_cmp_ge_u32 s2, 256")
    P("s_cbranch_scc1 L_exit")
    if OPT.stamps:
        P("%s %s" % ("s_memtime" if OPT.cyc else "s_memrealtime", s(sTS, 2)))
        PEND[0] = 15
    for base, off in ((S_X, 0), (S_QKV, 8), (S_W1, 40), (S_W3, 48), (S_PHI, 16), (S_WO, 24), (S_W2, 56), (S_OUT, 64), (S_DBG, 72), (S_WS, 80)):
        P("s_load_dwordx2 %s, s[0:1], %d" % (s(base, 2), off))
    P("v_and_b32 %s, 63, v0" % v(vL))
    P("v_lshrrev_b32 v15, 6, v0")
    P("s_nop 0")
    P("v_readfirstlane_b32 %s, v15" % s(sW))
    P("s_and_b32 %s, s2, 7" % s(sT0))
    P("s_lshr_b32 %s, s2, 3" % s(sT1))
    P("s_and_b32 %s, %s, 1" % (s(sGH), s(sT0)))
    P("s_lshr_b32 %s, %s, 1" % (s(sT0), s(sT0)))
    P("s_lshl_b32 %s, %s, 2" % (s(sT0), s(sT0)))
    P("s_lshr_b32 %s, %s, 3" % (s(sM), s(sT1)))
    P("s_add_u32 %s, %s, %s" % (s(sM), s(sM), s(sT0)))
    P("s_and_b32 %s, %s, 7" % (s(sGI), s(sT1)))
    P("s_and_b32 %s, %s, 3" % (s(sTY), s(sGI)))
    P("s_lshl_b32 %s, %s, 2" % (s(sT0), s(sGH)))
    P("s_add_u32 %s, %s, %s" % (s(sTY), s(sTY), s(sT0)))
    P("v_lshrrev_b32 v220, 3, %s" % v(vL))
    P("v_and_b32 v221, 7, %s" % v(vL))
    P("v_mul_u32_u24 %s, %d, v220" % (v(vXO), RS_X))
    P("v_lshl_add_u32 %s, v221, 4, %s" % (v(vXO), v(vXO)))
    P("s_lshl_b32 %s, %s, 7" % (s(sT0), s(sM)))
    P("s_lshl_b32 %s, %s, 5" % (s(sT1), s(sW)))
    P("s_add_u32 %s, %s, %s" % (s(sT0), s(sT0), s(sT1)))
    P("s_mul_i32 %s, %s, %d" % (s(sT0), s(sT0), RS_X))
    for p in range(4):
        P("s_add_u32 %s, %s, %d" % (s(sRB + p), s(sGI), p))
        P("s_and_b32 %s, %s, 3" % (s(sRB + p), s(sRB + p)))
        P("s_mul_i32 %s, %s, %d" % (s(sXO + p), s(sRB + p), 8 * RS_X))
        P("s_add_u32 %s, %s, %s" % (s(sXO + p), s(sXO + p), s(sT0)))
    sizes = {S_X: 2048 * 896, S_QKV: 448 * 2688, S_PHI: 16 * 1568, S_WO: 448 * 896, S_W1: 448 * 3584, S_W3: 448 * 3584,
             S_W2: 1792 * 896, S_OUT: 2048 * 896, S_DBG: 256, S_WS: WS_SIZE}
    for b, sz in sizes.items():
        P("s_mov_b32 %s, %d" % (s(b + 2), sz))
        P("s_mov_b32 %s, 0x20000" % s(b + 3))
    P("s_waitcnt lgkmcnt(0)")
    P("@flush")
    stamp(P, 10)


def x_loads():
    return [[I("buffer_load_dwordx4 %s, %s, %s, %s offen offset:%d" % (v(XR(p, j), 4), v(vXO), srd(S_X), s(sXO + p), j * 128), "x%d" % p)]
            for p in range(4) for j in range(7)]


def common_setup(P):
    P("s_mov_b32 %s, 0x3f803f80" % s(sONES))
    P("s_mov_b32 %s, 0x00003f80" % s(sE0))
    P("s_mov_b32 %s, 0x3f800000" % s(sE1))
    P("s_mov_b32 s60, 0")
    P("s_mov_b32 s61, -1")
    P("s_lshl_b32 %s, %s, 11" % (s(sLW16), s(sW)))
    P("s_lshl_b32 %s, %s, 12" % (s(sLW32), s(sW)))
    P("s_lshl_b32 %s, %s, 10" % (s(sLW8), s(sW)))
    P("v_lshlrev_b32 %s, 4, %s" % (v(vL16), v(vL)))
    P("v_lshlrev_b32 %s, 2, %s" % (v(vL4), v(vL)))
    P("v_lshrrev_b32 v220, 3, %s" % v(vL))
    P("v_and_b32 v221, 7, %s" % v(vL))
    P("v_bfe_u32 v223, v220, 1, 1")
    P("v_lshlrev_b32 v223, 2, v223")
    P("v_xor_b32 v223, v223, v221")
    P("v_lshlrev_b32 v236, 4, v223")
    P("v_mul_u32_u24 v237, %d, v220" % RS_QKV)
    P("v_add_u32 %s, v237, v236" % v(vDQ))
    P("v_mul_u32_u24 v237, %d, v220" % RS_FF)
    P("v_add_u32 %s, v237, v236" % v(vDG))
    P("v_xor_b32 v236, 32, v236")
    P("v_add_u32 %s, v237, v236" % v(vDU))
    P("v_lshrrev_b32 v237, 2, %s" % v(vL))
    P("v_mul_u32_u24 v237, %d, v237" % RS_FF)
    P("v_and_b32 v236, 3, %s" % v(vL))
    P("v_lshlrev_b32 v236, 4, v236")
    P("v_add_u32 %s, v237, v236" % v(vDG64))
    P("v_xor_b32 v236, 32, v236")
    P("v_add_u32 %s, v237, v236" % v(vDU64))
    P("v_mov_b32 %s, 1.0" % v(vMASKF))
    P("v_cndmask_b32 %s, %s, 0, %s" % (v(vMASKF), v(vMASKF), sHI))
    if OPT.stamps:
        P("s_lshl_b32 %s, s2, 2" % s(sTSB))
        P("s_add_u32 %s, %s, %s" % (s(sTSB), s(sTSB), s(sW)))
        P("s_lshl_b32 %s, %s, 7" % (s(sTSB), s(sTSB)))
        P("s_add_u32 %s, %s, %d" % (s(sTSB), s(sTSB), WS_TS))


def code_prefetch():
    if not OPT.prefetch_code:
        return []
    P = Prog()
    P("s_getpc_b64 s[50:51]")
    P("L_pcref_%d:" % uid[0])
    P("s_lshr_b32 %s, s2, 3" % s(sT3))
    P("s_and_b32 %s, %s, 7" % (s(sT3), s(sT3)))
    P("s_lshl_b32 %s, %s, 2" % (s(sT3), s(sT3)))
    P("s_add_u32 %s, %s, %s" % (s(sT3), s(sT3), s(sW)))
    P("s_lshl_b32 %s, %s, 11" % (s(sT3), s(sT3)))
    P("s_sub_u32 s50, s50, L_pcref_%d-%s" % (uid[0], NAME))
    P("s_subb_u32 s51, s51, 0")
    P("v_and_b32 v251, 15, %s" % v(vL))
    P("v_lshlrev_b32 v251, 7, v251")
    P("v_add_u32 v251, %s, v251" % s(sT3))
    P("v_min_u32 v251, L_exit-%s, v251" % NAME)
    P("global_load_dword v252, v251, s[50:51]", tag="pf")
    uid[0] += 1
    return P.ins


def dma(srd_base, voff, sbase, soff_const, ldsbase_s, lds_const, tag, extra=""):
    g = []
    g += L("s_add_u32 %s, %s, %d" % (s(sSOFF), s(sbase), soff_const)) if soff_const else L("s_mov_b32 %s, %s" % (s(sSOFF), s(sbase)))
    if ldsbase_s is None:
        g = L("s_mov_b32 m0, %d" % lds_const) + g
    else:
        g = L("s_add_u32 m0, %s, %d" % (s(ldsbase_s), lds_const)) + g
    g += [I("buffer_load_dwordx4 %s, %s, %s offen lds%s" % (v(voff), srd(srd_base), s(sSOFF), extra), tag)]
    return g


RING_OFF = [0]


class Chunk:
    def __init__(self, kind, row0, nrows, idx):
        self.kind, self.row0, self.nrows, self.idx = kind, row0, nrows, idx
        self.slot = SLOT * ((idx + RING_OFF[0]) % NSLOT)
        self.tag = "c%d" % idx


def chunk_dma(ch):
    k, r0, sl, tag = ch.kind, ch.row0, ch.slot, ch.tag
    if OPT.hot_w:
        r0 = 0
    out = []
    if k in ("ffA", "ffB"):
        sb = sB2 if k == "ffA" else sB3
        for blk, (sr, vo) in enumerate(((S_W1, vDG), (S_W3, vDU))):
            for i in range(2):
                out.append(dma(sr, vo, sb, (r0 + 8 * i) * RS_FF, sLW16, sl + blk * 8192 + i * 1024, tag))
    elif k in ("q", "k", "v"):
        sec = {"q": 0, "k": 896, "v": 1792}[k]
        if ch.nrows == 128:
            for i in range(4):
                out.append(dma(S_QKV, vDQ, sB4, (r0 + 8 * i) * RS_QKV + sec, sLW32, sl + i * 1024, tag))
        else:
            for i in range(2):
                out.append(dma(S_QKV, vDQ, sB5, (r0 + 8 * i) * RS_QKV + sec, sLW16, sl + i * 1024, tag))
    elif k[0] == "h":
        b32, b16 = (sB0, sB1) if k == "hA" else (sB4, sB5)
        co = 64 if k == "hF1" else 0
        if ch.nrows == 128:
            for blk, (sr, vo) in enumerate(((S_W1, vDG64), (S_W3, vDU64))):
                for i in range(2):
                    out.append(dma(sr, vo, b32, (r0 + 16 * i) * RS_FF + co, sLW16, sl + blk * 8192 + i * 1024, tag))
        else:
            for blk, (sr, vo) in enumerate(((S_W1, vDG64), (S_W3, vDU64))):
                out.append(dma(sr, vo, b16, r0 * RS_FF + co, sLW8, sl + blk * 8192, tag))
    return out


def tile_addr_setup(P, kind, base):
    l = v(vL)
    P("v_lshrrev_b32 v220, 5, %s" % l)
    P("v_bfe_u32 v222, %s, 2, 2" % l)
    P("v_lshl_add_u32 v220, v220, 3, v222")
    P("v_bfe_u32 v221, %s, 4, 1" % l)
    P("v_and_b32 v223, 3, %s" % l)
    P("v_bfe_u32 v222, %s, 3, 1" % l)
    n = 0
    if kind == "ff":
        P("v_lshlrev_b32 v236, 7, v220")
        P("v_lshl_add_u32 v236, v221, 13, v236")
        P("v_lshl_add_u32 v236, v223, 3, v236")
        P("v_lshl_or_b32 v237, v222, 1, v221")
        for t in range(4):
            P("v_xor_b32 v220, %d, v237" % t)
            P("v_lshl_add_u32 %s, v220, 5, v236" % v(base + t))
        n = 4
    elif kind == "att":
        P("v_lshlrev_b32 v236, 7, v220")
        P("v_lshlrev_b32 v237, 5, v221")
        P("v_lshl_add_u32 v237, v223, 3, v237")
        P("v_lshlrev_b32 v222, 6, v222")
        for j in range(2):
            P("v_add_u32 v220, %d, v237" % (56 * j))
            P("v_xor_b32 v220, v220, v222")
            P("v_add_u32 %s, v220, v236" % v(base + j))
        n = 2
    elif kind == "h":
        P("v_lshlrev_b32 v236, 6, v220")
        P("v_lshl_add_u32 v236, v221, 13, v236")
        P("v_lshl_add_u32 v236, v223, 3, v236")
        for t in range(2):
            P("v_xor_b32 v220, %d, v221" % t)
            P("v_lshl_add_u32 %s, v220, 5, v236" % v(base + t))
        n = 2
    for t in range(n):
        P("v_add_u32 %s, 0x4000, %s" % (v(base + 4 + t), v(base + t)))


def tile_reads(addr_base, t, ch, srow, rowbytes, buf):
    off = ch.slot + srow * 16 * rowbytes
    reg = addr_base + t
    if ch.slot >= 65536:
        reg, off = addr_base + 4 + t, off - 16384
    assert 0 <= off and off + 4 * rowbytes <= 65535
    return [I("ds_read_b64_tr_b16 %s, %s offset:%d" % (a(buf, 2), v(reg), off)),
            I("ds_read_b64_tr_b16 %s, %s offset:%d" % (a(buf + 2, 2), v(reg), off + 4 * rowbytes))]


class Group:
    def __init__(self, kind, tiles, accs, addr_base):
        self.kind, self.tiles, self.accs, self.addr_base = kind, tiles, accs, addr_base


def build_p1_stream(groups, fillers, bar_pre=None, bar_post=None, tail=None):
    bar_pre, bar_post = bar_pre or {}, bar_post or {}
    chunks, mf = [], []
    for gi, g in enumerate(groups):
        four = len(g.tiles) == 4
        plan = [(64 * c, 64) for c in range(7)] if four else [(0, 128), (128, 128), (256, 128), (384, 64)]
        rowbytes = 64 if g.kind[0] == "h" else 128
        g.first_chunk = len(chunks)
        for (r0, nr) in plan:
            ch = Chunk(g.kind, r0, nr, len(chunks))
            chunks.append(ch)
            for sr in range(nr // 16):
                for ti, t in enumerate(g.tiles):
                    mf.append(dict(g=gi, ch=ch, srow=sr, t=t, acc=g.accs[ti], ks=(r0 // 16) + sr, rowbytes=rowbytes,
                                   addr=g.addr_base, first_in_chunk=(sr == 0 and ti == 0)))
    N = len(mf)
    LA = 4
    for n, m in enumerate(mf):
        m["buf"] = A_WB + 4 * (n % 8)
    slots = [[] for _ in range(N)]
    pre = []

    def reads(m):
        return tile_reads(m["addr"], m["t"], m["ch"], m["srow"], m["rowbytes"], m["buf"])
    pre += L("@waitvm %s" % chunks[0].tag) + L("s_barrier") + bar_post.get(0, [])
    for n in range(LA):
        pre += reads(mf[n])
    pending_dma = []
    last_dma = -10
    for n, m in enumerate(mf):
        sl = slots[n]
        C = "0" if m["ks"] == 0 else v(m["acc"], 16)
        mi = I("v_mfma_f32_32x32x16_bf16 %s, %s, %s, %s" % (v(m["acc"], 16), a(m["buf"], 4), a(A_X + 4 * m["ks"], 4), C))
        if n % 2 == 0 and n + 1 < N and OPT.pair_wait:
            mi.meta["also_wait"] = {("a", mf[n + 1]["buf"] + k) for k in range(4)}
        sl.append(mi)
        if n % 2 == 0:
            sl.append(I("@cost"))
        if n + LA < N:
            nx = mf[n + LA]
            if nx["first_in_chunk"]:
                c = nx["ch"].idx
                assert not any(x.tag == nx["ch"].tag for g_ in pending_dma for x in g_), "dma not issued before its wait"
                pre_s, post_s = [], []
                if OPT.stamps and OPT.chunkst and OPT.cs0 <= c < OPT.cs0 + 8:
                    Pq = Prog(); stamp(Pq, 16 + 2 * (c - OPT.cs0)); pre_s = Pq.ins
                    Pq = Prog(); stamp(Pq, 17 + 2 * (c - OPT.cs0)); post_s = Pq.ins
                sl += pre_s + bar_pre.get(c, []) + L("@waitvm %s" % nx["ch"].tag) + ([] if OPT.no_bar else L("s_barrier")) + post_s + bar_post.get(c, [])
                nc = c + NSLOT - 2
                if c >= 2 and nc < len(chunks) and not OPT.no_dma:
                    pending_dma += chunk_dma(chunks[nc])
                elif c >= 2 and tail and nc - len(chunks) < len(tail):
                    pending_dma += tail[nc - len(chunks)]
            if not OPT.no_reads:
                sl += reads(nx)
        if pending_dma and (n - last_dma >= OPT.dma_gap):
            sl += pending_dma.pop(0)
            last_dma = n
    assert not pending_dma
    for gi, lo, hi, fl in ([] if OPT.no_fill else fillers):
        if not fl:
            continue
        idx = [n for n, m in enumerate(mf) if m["g"] == gi]
        place_fillers(slots, idx[lo:hi], fl)
    if OPT.stamps and not OPT.chunkst:
        seen = set()
        for n, m in enumerate(mf):
            if m["g"] not in seen and m["g"] > 0:
                Pq = Prog(); stamp(Pq, 11 + m["g"]); slots[n] = Pq.ins + slots[n]
            seen.add(m["g"])
    body = []
    for sl in slots:
        body += sl
    return chunks, pre, body


def group_chunks(groups):
    chunks = []
    for g in groups:
        plan = [(64 * c, 64) for c in range(7)] if len(g.tiles) == 4 else [(0, 128), (128, 128), (256, 128), (384, 64)]
        for (r0, nr) in plan:
            chunks.append(Chunk(g.kind, r0, nr, len(chunks)))
    return chunks


def cost(x):
    if isinstance(x, (list, tuple)):
        return sum(cost(y) for y in x)
    k, op = x.kind, x.op
    if k in ("label", "none"):
        return 0.0
    if k == "pseudo":
        return 3.0 if op == "@cost" else (2.0 if op.startswith("@wait") else 0.0)
    if x.meta.get("raw"):
        return 0.0
    if k == "mfma":
        return 32.0 if x.meta.get("filler") else 8.0
    if k == "vmem":
        return 10.0 if "atomic" in op else 18.0
    if k == "ds":
        return 9.0 if op == "ds_write_b128" else (6.0 if op.startswith("ds_write") else 4.4)
    if k == "valu":
        return 8.8 if x.meta.get("trans") else 4.4
    if op == "s_nop":
        return 4.4 * (int(x.text.split()[1]) + 1)
    if op == "s_barrier":
        return 8.0
    return 2.2


def place_fillers(slots, idx, fl):
    total = cost(fl)
    base = [cost(slots[n]) for n in idx]
    lo, hi = 0.0, max(base) + total
    for _ in range(40):
        mid = (lo + hi) / 2
        if sum(max(0.0, mid - b) for b in base) >= total:
            hi = mid
        else:
            lo = mid
    room = [max(0.0, hi - b) for b in base]
    pos, done, tgt = 0, 0.0, 0.0
    for k, n_ in enumerate(idx):
        tgt += room[k]
        while pos < len(fl) and (done + cost(fl[pos]) / 2.0 <= tgt or k == len(idx) - 1):
            slots[n_] += fl[pos]
            done += cost(fl[pos])
            pos += 1
    assert pos == len(fl)


def G(lst):
    return [[x] for x in lst]


def merge(a_, b_):
    out, nb, j = [], len(b_), 0
    na = max(1, len(a_))
    for i, g in enumerate(a_):
        out.append(g)
        tgt = (nb * (i + 1)) // na
        while j < tgt:
            out.append(b_[j]); j += 1
    out += b_[j:]
    return out


def flat(groups):
    o = []
    for g in groups:
        o += g if isinstance(g, list) else [g]
    return o


def layernorm(P, vm):
    T = vT

    def regs(p): return [XR(p, j) + d for j in range(7) for d in range(4)]
    def st(p): b = T + 4 * (p % 2); return b, b + 1, b + 2, b + 3

    def S(p):
        sA, sB_, qA, qB = st(p)
        o = []
        for k, x in enumerate(regs(p)):
            sa, qa = (sA, qA) if k % 2 == 0 else (sB_, qB)
            o.append(I("v_dot2_f32_bf16 %s, %s, %s, %s" % (v(sa), v(x), s(sONES), "0" if k < 2 else v(sa))))
            o.append(I("v_dot2_f32_bf16 %s, %s, %s, %s" % (v(qa), v(x), v(x), "0" if k < 2 else v(qa))))
        return o

    def F(p):
        sA, sB_, qA, qB = st(p)
        o = L("v_add_f32 %s, %s, %s" % (v(sA), v(sA), v(sB_)))
        o += L("v_add_f32 %s, %s, %s" % (v(qA), v(qA), v(qB)))
        for ctl in ("quad_perm:[1,0,3,2]", "quad_perm:[2,3,0,1]", "row_half_mirror"):
            o += L("v_add_f32_dpp %s, %s, %s %s row_mask:0xf bank_mask:0xf" % (v(sA), v(sA), v(sA), ctl))
            o += L("v_add_f32_dpp %s, %s, %s %s row_mask:0xf bank_mask:0xf" % (v(qA), v(qA), v(qA), ctl))
        inv = 0x3B124925
        o += L("v_mul_f32 %s, 0x%x, %s" % (v(sA), inv, v(sA)))
        o += L("v_mul_f32 %s, 0x%x, %s" % (v(qA), inv, v(qA)))
        o += L("v_fma_f32 %s, -%s, %s, %s" % (v(qA), v(sA), v(sA), v(qA)))
        o += L("v_cvt_pk_bf16_f32 %s, 0, %s" % (v(sA), v(sA)))
        o += L("v_max_f32 %s, 0, %s" % (v(qA), v(qA)))
        o += L("v_sub_f32 %s, 0, %s" % (v(sB_), v(sA)))
        o += L("v_cvt_pk_bf16_f32 %s, 0, %s" % (v(qA), v(qA)))
        o += L("v_add_f32 %s, 0x3727c5ac, %s" % (v(qA), v(qA)))
        o += L("v_cvt_pk_bf16_f32 %s, 0, %s" % (v(qA), v(qA)))
        o += L("v_sqrt_f32 %s, %s" % (v(qA), v(qA)))
        o += L("s_lshl_b32 %s, %s, 5" % (s(sT1), s(sRB + p)))
        o += L("v_cvt_pk_bf16_f32 %s, 0, %s" % (v(qA), v(qA)))
        o += L("v_add_u32 %s, %s, %s" % (v(vLT), s(sT1), v(vLRW)))
        o += L("v_rcp_f32 %s, %s" % (v(qA), v(qA)))
        o += L("s_mul_i32 %s, %s, %d" % (s(sT1), s(sRB + p), 8 * XROW))
        o += L("v_add_u32 %s, %s, %s" % (v(vXW + p), s(sT1), v(vLW)))
        o += L("ds_write_b32 %s, %s" % (v(vLT), v(qA)))
        return o

    def C(p):
        sA, sB_, qA, qB = st(p)
        tt = T + 8
        o = []
        r = regs(p)
        for b0 in range(0, 28, 4):
            batch = r[b0:b0 + 4]
            for k, x in enumerate(batch):
                o.append(I("v_dot2_f32_bf16 %s, %s, %s, %s" % (v(tt + 2 * k), v(x), s(sE0), v(sB_))))
                o.append(I("v_dot2_f32_bf16 %s, %s, %s, %s" % (v(tt + 2 * k + 1), v(x), s(sE1), v(sB_))))
            for k, x in enumerate(batch):
                o.append(I("v_cvt_pk_bf16_f32 %s, %s, %s" % (v(x), v(tt + 2 * k), v(tt + 2 * k + 1))))
            j = b0 // 4
            if j < 4:
                o.append(I("ds_write_b128 %s, %s offset:%d" % (v(vXW + p), v(XR(p, j), 4), j * 128)))
        return o
    P.ext(S(0))
    P.ext(flat(vm[0]))
    for p in range(4):
        if p < 3:
            P.ext(flat(merge(G(S(p + 1)), G(F(p)))))
            P.ext(flat(merge(G(C(p)), vm[p + 1])))
        else:
            P.ext(F(p))
            P.ext(C(p))
    for sx in range(16):
        P("ds_read_b128 %s, %s offset:%d" % (a(A_X + 4 * sx, 4), v(vLF), sx * 32))
    P("ds_read_b32 %s, %s" % (v(vR), v(vLRR)))
    P("v_mul_f32 %s, 0x%x, %s" % (v(vC1), NLOG2E, v(vR)))
    P("v_mul_f32 %s, 0x%x, %s" % (v(vCS), LOG2E, v(vR)))


def ln_stage_b():
    o = []
    for p in range(4):
        for j in range(4, 7):
            o.append(I("ds_write_b128 %s, %s offset:%d" % (v(vXW + p), v(XR(p, j), 4), (j - 4) * 128)))
    for sx in range(12):
        o.append(I("ds_read_b128 %s, %s offset:%d" % (a(A_X + 64 + 4 * sx, 4), v(vLF), sx * 32)))
    return o


def ln_addr_setup(P):
    l = v(vL)
    P("s_mul_i32 %s, %s, %d" % (s(sT1), s(sW), XST_W))
    P("s_add_u32 %s, %s, %d" % (s(sT1), s(sT1), L_XST))
    P("v_lshrrev_b32 v220, 3, %s" % l)
    P("v_and_b32 v221, 7, %s" % l)
    P("v_mul_u32_u24 %s, %d, v220" % (v(vLW), XROW))
    P("v_lshl_add_u32 %s, v221, 4, %s" % (v(vLW), v(vLW)))
    P("v_add_u32 %s, %s, %s" % (v(vLW), s(sT1), v(vLW)))
    P("s_lshl_b32 %s, %s, 7" % (s(sT2), s(sW)))
    P("s_add_u32 %s, %s, %d" % (s(sT2), s(sT2), L_RSTAT))
    P("v_lshlrev_b32 %s, 2, v220" % v(vLRW))
    P("v_add_u32 %s, %s, %s" % (v(vLRW), s(sT2), v(vLRW)))
    P("v_and_b32 v220, 31, %s" % l)
    P("v_lshrrev_b32 v221, 5, %s" % l)
    P("v_mul_u32_u24 %s, %d, v220" % (v(vLF), XROW))
    P("v_lshl_add_u32 %s, v221, 4, %s" % (v(vLF), v(vLF)))
    P("v_add_u32 %s, %s, %s" % (v(vLF), s(sT1), v(vLF)))
    P("v_lshlrev_b32 %s, 2, v220" % v(vLRR))
    P("v_add_u32 %s, %s, %s" % (v(vLRR), s(sT2), v(vLRR)))


def ffn_epilogue(acc, tmp, sbase, toff, tag="hst"):
    Gr = [acc + i for i in range(8)]
    U = [acc + 8 + i for i in range(8)]
    T = [tmp + i for i in range(8)]
    o = []
    o += [I("v_mul_f32 %s, %s, %s" % (v(T[i]), v(vC1), v(Gr[i]))) for i in range(8)]
    o += [I("v_exp_f32 %s, %s" % (v(T[i]), v(T[i]))) for i in range(8)]
    o += [I("v_mul_f32 %s, %s, %s" % (v(Gr[i]), v(Gr[i]), v(U[i]))) for i in range(8)]
    o += [I("v_add_f32 %s, 1.0, %s" % (v(T[i]), v(T[i]))) for i in range(8)]
    o += [I("v_rcp_f32 %s, %s" % (v(T[i]), v(T[i]))) for i in range(8)]
    o += [I("v_mul_f32 %s, %s, %s" % (v(Gr[i]), v(Gr[i]), v(T[i]))) for i in range(8)]
    o += [I("v_cvt_pk_bf16_f32 %s, %s, %s" % (v(U[k]), v(Gr[2 * k]), v(Gr[2 * k + 1]))) for k in range(4)]
    o += [I("buffer_store_dwordx4 %s, %s, %s, %s offen offset:%d sc1" % (v(U[0], 4), v(vL16), srd(S_WS), s(sbase), toff), tag)]
    return o


def exp_pm(Pr, TA, tmp):
    mx, mn, t0, t1 = [tmp + i for i in range(4)]
    o = []
    A = o.append
    A(I("v_max3_f32 %s, %s, %s, %s" % (v(mx), v(Pr[0]), v(Pr[1]), v(Pr[2]))))
    A(I("v_min3_f32 %s, %s, %s, %s" % (v(mn), v(Pr[0]), v(Pr[1]), v(Pr[2]))))
    for k in range(3, 15, 2):
        A(I("v_max3_f32 %s, %s, %s, %s" % (v(mx), v(mx), v(Pr[k]), v(Pr[k + 1]))))
        A(I("v_min3_f32 %s, %s, %s, %s" % (v(mn), v(mn), v(Pr[k]), v(Pr[k + 1]))))
    A(I("v_max_f32 %s, %s, %s" % (v(mx), v(mx), v(Pr[15]))))
    A(I("v_min_f32 %s, %s, %s" % (v(mn), v(mn), v(Pr[15]))))
    A(I("v_mov_b32 %s, %s" % (v(t0), v(mx))))
    A(I("v_mov_b32 %s, %s" % (v(t1), v(mn))))
    A(I("v_permlane32_swap_b32 %s, %s" % (v(mx), v(t0))))
    A(I("v_permlane32_swap_b32 %s, %s" % (v(mn), v(t1))))
    A(I("v_max_f32 %s, %s, %s" % (v(mx), v(mx), v(t0))))
    A(I("v_min_f32 %s, %s, %s" % (v(mn), v(mn), v(t1))))
    A(I("v_mul_f32 %s, %s, %s" % (v(mx), v(mx), v(vCS))))
    A(I("v_mul_f32 %s, %s, %s" % (v(mn), v(mn), v(vCS))))
    for i in range(16):
        A(I("v_fma_f32 %s, %s, %s, -%s" % (v(TA[i]), v(Pr[i]), v(vCS), v(mx))))
        A(I("v_fma_f32 %s, %s, %s, %s" % (v(Pr[i]), v(Pr[i]), v(vC1), v(mn))))
    for i in range(16):
        A(I("v_exp_f32 %s, %s" % (v(TA[i]), v(TA[i]))))
        A(I("v_exp_f32 %s, %s" % (v(Pr[i]), v(Pr[i]))))
    return o


def pack_pm(Pr, TA):
    o = []
    for k in range(8):
        o.append(I("v_cvt_pk_bf16_f32 %s, %s, %s" % (v(TA[k]), v(TA[2 * k]), v(TA[2 * k + 1]))))
        o.append(I("v_cvt_pk_bf16_f32 %s, %s, %s" % (v(Pr[k]), v(Pr[2 * k]), v(Pr[2 * k + 1]))))
    return o


def k_softmax(Pr, TA, tmp, head):
    sp, sn, sp2, sn2, t0, t1 = [tmp + 4 + i for i in range(4)] + [tmp + 2, tmp + 3]
    o = exp_pm(Pr, TA, tmp)
    A = o.append
    A(I("v_add_f32 %s, %s, %s" % (v(sp), v(TA[0]), v(TA[1]))))
    A(I("v_add_f32 %s, %s, %s" % (v(sn), v(Pr[0]), v(Pr[1]))))
    A(I("v_add_f32 %s, %s, %s" % (v(sp2), v(TA[12]), v(TA[13]))))
    A(I("v_add_f32 %s, %s, %s" % (v(sn2), v(Pr[12]), v(Pr[13]))))
    for i in range(2, 12):
        A(I("v_add_f32 %s, %s, %s" % (v(sp), v(sp), v(TA[i]))))
        A(I("v_add_f32 %s, %s, %s" % (v(sn), v(sn), v(Pr[i]))))
        if i < 4:
            A(I("v_add_f32 %s, %s, %s" % (v(sp2), v(sp2), v(TA[12 + i]))))
            A(I("v_add_f32 %s, %s, %s" % (v(sn2), v(sn2), v(Pr[12 + i]))))
    A(I("v_fma_f32 %s, %s, %s, %s" % (v(sp), v(sp2), v(vMASKF), v(sp))))
    A(I("v_fma_f32 %s, %s, %s, %s" % (v(sn), v(sn2), v(vMASKF), v(sn))))
    A(I("v_mov_b32 %s, %s" % (v(t0), v(sp))))
    A(I("v_mov_b32 %s, %s" % (v(t1), v(sn))))
    A(I("v_permlane32_swap_b32 %s, %s" % (v(sp), v(t0))))
    A(I("v_permlane32_swap_b32 %s, %s" % (v(sn), v(t1))))
    A(I("v_add_f32 %s, %s, %s" % (v(sp), v(sp), v(t0))))
    A(I("v_add_f32 %s, %s, %s" % (v(sn), v(sn), v(t1))))
    A(I("v_rcp_f32 %s, %s" % (v(sn), v(sn))))
    A(I("v_rcp_f32 %s, %s" % (v(sp2), v(sp))))
    A(I("v_mul_f32 %s, %s, %s" % (v(sn), v(sn), v(sp))))
    A(I("v_mul_f32 %s, %s, %s" % (v(vVF + head), v(sp2), v(vR))))
    A(I("v_cvt_pk_bf16_f32 %s, %s, 0" % (v(vONE + head), v(sp2))))
    for i in range(16):
        A(I("v_mul_f32 %s, %s, %s" % (v(Pr[i]), v(Pr[i]), v(sn))))
    return o + pack_pm(Pr, TA)


def feature_logits(acc, pk, dst, head):
    o = []
    for k in range(8):
        o.append(I("v_cvt_pk_bf16_f32 %s, %s, %s" % (v(pk + k), v(acc + 2 * k), v(acc + 2 * k + 1))))
    for k in (6, 7):
        o.append(I("v_cndmask_b32 %s, %s, 0, %s" % (v(pk + k), v(pk + k), sHI)))
    o.append(I("v_mfma_f32_32x32x16_bf16 %s, %s, %s, 0" % (v(dst, 16), a(A_PHI + 8 * head, 4), v(pk, 4)), filler=True))
    o.append(I("v_mfma_f32_32x32x16_bf16 %s, %s, %s, %s" % (v(dst, 16), a(A_PHI + 8 * head + 4, 4), v(pk + 4, 4), v(dst, 16)), filler=True))
    return o


def exch_addr_setup():
    o = []
    l = v(vL)
    A = lambda t: o.append(I(t))
    A("v_and_b32 v220, 1, %s" % l)
    A("v_bfe_u32 v221, %s, 2, 2" % l)
    A("v_lshl_or_b32 v220, v221, 1, v220")
    A("v_bfe_u32 v221, %s, 1, 1" % l)
    A("v_lshl_or_b32 v220, v221, 3, v220")
    A("v_lshrrev_b32 v221, 5, %s" % l)
    A("v_xor_b32 v220, v220, v221")
    A("v_lshlrev_b32 v220, 3, v220")
    A("v_and_b32 v221, 31, %s" % l)
    A("v_lshl_add_u32 v220, v221, 7, v220")
    A("s_lshl_b32 %s, %s, 12" % (s(sP0), s(sW)))
    A("s_add_u32 %s, %s, %d" % (s(sP0), s(sP0), L_PHI))
    A("v_add_u32 v220, %s, v220" % s(sP0))
    for c in range(8):
        A("v_xor_b32 %s, %d, v220" % (v(vXA + c), 16 * c))
    A("v_bfe_u32 v220, %s, 2, 1" % l)
    A("v_bfe_u32 v221, %s, 3, 1" % l)
    A("v_lshl_or_b32 v220, v221, 3, v220")
    A("v_lshrrev_b32 v221, 5, %s" % l)
    A("v_lshl_or_b32 v220, v221, 2, v220")
    A("v_bfe_u32 v222, %s, 4, 1" % l)
    A("v_and_b32 v223, 3, %s" % l)
    A("v_lshl_or_b32 v222, v222, 2, v223")
    A("v_bfe_u32 v223, %s, 2, 2" % l)
    A("v_lshl_or_b32 v223, v221, 3, v223")
    A("v_lshlrev_b32 v223, 7, v223")
    A("s_and_b32 %s, %s, 1" % (s(sP0), s(sW)))
    A("s_lshl_b32 %s, %s, 3" % (s(sP0), s(sP0)))
    A("s_lshr_b32 %s, %s, 1" % (s(sP1_), s(sW)))
    A("s_lshl_b32 %s, %s, 3" % (s(sP2_), s(sP1_)))
    A("s_lshl_b32 %s, %s, 14" % (s(sP1_), s(sP1_)))
    A("s_add_u32 %s, %s, %d" % (s(sP1_), s(sP1_), L_PHI))
    for q in range(2):
        A("v_xor_b32 v236, %d, v220" % (2 * q))
        A("v_or_b32 v237, %s, v222" % s(sP0))
        A("v_xor_b32 v237, v237, v236")
        A("v_lshl_add_u32 v237, v237, 3, v223")
        A("v_add_u32 v237, %d, v237" % (512 * q))
        A("v_add_u32 %s, %s, v237" % (v(vKA + q), s(sP1_)))
        A("v_or_b32 v237, %s, v222" % s(sP2_))
        A("v_xor_b32 v237, v237, v236")
        A("v_lshl_add_u32 v237, v237, 3, v223")
        A("v_add_u32 %s, %d, v237" % (v(vKA + 2 + q), L_V + 512 * q))
    return o


vWP = 142
vFE = 143


def wphi_addr():
    o = []
    l = v(vL)
    A = lambda t: o.append(I(t))
    A("v_bfe_u32 v220, %s, 4, 1" % l)
    A("v_and_b32 v221, 3, %s" % l)
    A("v_lshl_or_b32 v220, v220, 2, v221")
    A("v_cmp_eq_u32 vcc, 7, v220")
    A("v_lshlrev_b32 v220, 3, v220")
    A("v_lshrrev_b32 v221, 5, %s" % l)
    A("v_cndmask_b32 v220, v220, 0, vcc")
    A("v_bfe_u32 v222, %s, 2, 2" % l)
    A("v_lshl_or_b32 v221, v221, 2, v222")
    A("v_mul_u32_u24 v221, 56, v221")
    A("v_add_u32 v220, v220, v221")
    A("v_add_u32 %s, %d, v220" % (v(vWP), L_WPHI))
    return o


def wphi_frags():
    o = []
    for j in range(2):
        for sx in range(2):
            for q in range(2):
                off = j * 1568 + (16 * sx + 8 * q) * 56
                o.append(I("ds_read_b64_tr_b16 %s, %s offset:%d" % (a(A_PHI + 8 * j + 4 * sx + 2 * q, 2), v(vWP), off)))
    return o


def v_epilogue(accV):
    o = []
    for j in range(2):
        acc = accV[j]
        o += [I("v_mul_f32 %s, %s, %s" % (v(acc + i), v(acc + i), v(vVF + j))) for i in range(16)]
        o += [I("v_cvt_pk_bf16_f32 %s, %s, %s" % (v(acc + k), v(acc + 2 * k), v(acc + 2 * k + 1))) for k in range(8)]
        o.append(I("v_cndmask_b32 %s, %s, %s, %s" % (v(acc + 6), v(acc + 6), v(vONE + j), sHI)))
        o.append(I("v_cndmask_b32 %s, %s, 0, %s" % (v(acc + 7), v(acc + 7), sHI)))
        for rq in range(4):
            o.append(I("ds_write_b64 %s, %s offset:%d" % (v(vXA + 4 * j + rq), v(acc + 2 * rq, 2), L_V - L_PHI), "phiw"))
    return o


def k_epilogue(accK, dsts):
    o = []
    for j in range(2):
        pk = vT + 32 + 8 * j
        o += feature_logits(accK[j], pk, dsts[j], j)
    for j in range(2):
        Pr = [dsts[j] + i for i in range(16)]
        TA = [vT + i for i in range(16)]
        o += k_softmax(Pr, TA, vT + 16, j)
        for rq in range(4):
            o.append(I("ds_write_b64 %s, %s offset:%d" % (v(vXA + rq), v(TA[2 * rq], 2), j * 16384), "phiw"))
            o.append(I("ds_write_b64 %s, %s offset:%d" % (v(vXA + 4 + rq), v(Pr[2 * rq], 2), j * 16384), "phiw"))
    return o


def kv_tile(dst):
    o = []
    bufA, bufB = A_KVF, A_KVF + 32
    for ks in range(8):
        for q in range(2):
            o.append(I("ds_read_b64_tr_b16 %s, %s offset:%d" % (a(bufA + 4 * ks + 2 * q, 2), v(vKA + q), ks * 2048)))
            o.append(I("ds_read_b64_tr_b16 %s, %s offset:%d" % (a(bufB + 4 * ks + 2 * q, 2), v(vKA + 2 + q), ks * 2048)))
    for ks in range(8):
        o.append(I("v_mfma_f32_32x32x16_bf16 %s, %s, %s, %s" % (v(dst, 16), a(bufA + 4 * ks, 4), a(bufB + 4 * ks, 4), "0" if ks == 0 else v(dst, 16)), filler=True))
    return o


def kv_atomics(src):
    return [I("buffer_atomic_add_f32 %s, %s, %s, %s offen offset:%d" % (v(src + r), v(vL4), srd(S_WS), s(sKV), r * 256), "kvat") for r in range(16)]


def raw(lst):
    for x in lst:
        x.meta["raw"] = True
    return lst


def check_flag(vreg, dbg_off_s):
    ok, lab = label("zok"), label("zspin")
    o = L("v_readfirstlane_b32 %s, %s" % (s(sT3), v(vreg)))
    o += L("s_nop 1")
    o += L("s_cmp_eq_u32 %s, 1" % s(sT3))
    o += L("s_cbranch_scc1 " + ok)
    o += raw(L("""s_mov_b32 %s, %d
%s:
buffer_load_dword %s, off, %s, %s sc1
s_waitcnt vmcnt(0)
v_readfirstlane_b32 %s, %s
s_nop 1
s_cmp_eq_u32 %s, 1
s_cbranch_scc1 %s
s_sub_u32 %s, %s, 1
s_cmp_eq_u32 %s, 0
s_cbranch_scc1 %s
s_sleep 1
s_branch %s""" % (s(sSPIN), OPT.spin_max, lab, v(vreg), srd(S_DBG), s(dbg_off_s), s(sT3), v(vreg), s(sT3), ok,
                  s(sSPIN), s(sSPIN), s(sSPIN), ok, lab)))
    o += L(ok + ":")
    return o


def only_wave0(insts):
    skip = label("nw0")
    return L("s_cmp_lg_u32 %s, 0" % s(sW)) + L("s_cbranch_scc1 " + skip) + raw(insts) + L(skip + ":")


def signal(counter_s):
    return only_wave0(L("v_mov_b32 v253, 1") + L("s_mov_b64 exec, 1") +
                      L("buffer_atomic_add v253, off, %s, %s sc1" % (srd(S_WS), s(counter_s))) + L("s_mov_b64 exec, -1"))


def zero_init(is_A):
    skip = label("nz")
    o = []
    if is_A:
        o += L("s_lshl_b32 %s, %s, 1" % (s(sT2), s(sTY)))
        o += L("s_cmp_lg_u32 %s, %s" % (s(sT2), s(sM)))
        o += L("s_cbranch_scc1 " + skip)
        blk = L("v_mov_b32 v138, 0\nv_mov_b32 v139, 0\nv_mov_b32 v140, 0\nv_mov_b32 v141, 0")
        blk += L("s_lshl_b32 %s, %s, 14" % (s(sT2), s(sTY)))
        blk += L("s_add_u32 %s, %s, %s" % (s(sT2), s(sT2), s(sLW32)))
        blk += L("s_add_u32 %s, %s, %d" % (s(sT2), s(sT2), WS_KV))
        for i in range(4):
            blk += L("buffer_store_dwordx4 v[138:141], %s, %s, %s offen offset:%d sc1" % (v(vL16), srd(S_WS), s(sT2), i * 1024))
        blk += L("buffer_store_dword v138, off, %s, %s sc1" % (srd(S_WS), s(sCNTA)))
        o += raw(blk)
    else:
        o += L("s_cmp_lg_u32 %s, 0" % s(sTY))
        o += L("s_cbranch_scc1 " + skip)
        blk = L("v_mov_b32 v138, 0")
        blk += L("buffer_store_dword v138, off, %s, %s sc1" % (srd(S_WS), s(sCNTB)))
        blk += L("s_add_u32 %s, %s, %d" % (s(sT2), s(sCNTB), CNT_O - CNT_H))
        blk += L("buffer_store_dword v138, off, %s, %s sc1" % (srd(S_WS), s(sT2)))
        blk += L("buffer_store_dword v138, off, %s, %s sc1" % (srd(S_WS), s(sCNTE_)))
        o += raw(blk)
    o += L(skip + ":")
    return o


def warmup():
    o = []
    done = label("wud")
    labs = [label("wu") for _ in range(3)]
    o += L("v_min_u32 v143, 48, %s" % v(vL))
    o += L("s_mul_i32 %s, s2, 49" % s(sT2))
    o += L("v_add_u32 v143, %s, v143" % s(sT2))
    o += L("v_lshlrev_b32 v143, 7, v143")
    o += L("s_cmp_eq_u32 %s, 1" % s(sW)) + L("s_cbranch_scc1 " + labs[0])
    o += L("s_cmp_eq_u32 %s, 2" % s(sW)) + L("s_cbranch_scc1 " + labs[1])
    o += L("s_cmp_eq_u32 %s, 3" % s(sW)) + L("s_cbranch_scc1 " + labs[2])
    blk = L("v_min_u32 v143, 36, %s" % v(vL))
    blk += L("s_mul_i32 %s, s2, 37" % s(sT2))
    blk += L("v_add_u32 v143, %s, v143" % s(sT2))
    blk += L("v_lshlrev_b32 v143, 7, v143")
    blk += L("buffer_load_dword v252, v143, %s, 0 offen" % srd(S_QKV))
    blk += L("v_min_u32 v143, 12, %s" % v(vL))
    blk += L("s_mul_i32 %s, s2, 13" % s(sT2))
    blk += L("v_add_u32 v143, %s, v143" % s(sT2))
    blk += L("v_lshlrev_b32 v143, 7, v143")
    blk += L("buffer_load_dword v252, v143, %s, 0 offen" % srd(S_WO))
    blk += L("s_branch " + done)
    o += raw(blk)
    for lab, sr in zip(labs, (S_W1, S_W3, S_W2)):
        o += L(lab + ":")
        o += raw(L("buffer_load_dword v252, v143, %s, 0 offen" % srd(sr)))
        if sr != S_W2:
            o += raw(L("s_branch " + done))
    o += L(done + ":")
    return o


def l2_prefetch_w2():
    if not OPT.l2pf:
        return []
    o = L("s_lshr_b32 %s, s2, 3" % s(sT2))
    o += L("s_mul_i32 %s, %s, 392" % (s(sT3), s(sT2)))
    o += L("s_mul_i32 %s, %s, 98" % (s(sT1), s(sW)))
    o += L("s_add_u32 %s, %s, %s" % (s(sT3), s(sT3), s(sT1)))
    o += L("v_add_u32 v255, %s, %s" % (s(sT3), v(vL)))
    o += L("v_lshlrev_b32 v255, 7, v255")
    g1 = o + [I("buffer_load_dword v252, v255, %s, 0 offen" % srd(S_W2), "pf")]
    o = L("v_min_u32 v255, 33, %s" % v(vL))
    o += L("s_add_u32 %s, %s, 64" % (s(sT3), s(sT3)))
    o += L("v_add_u32 v255, %s, v255" % s(sT3))
    o += L("v_lshlrev_b32 v255, 7, v255")
    g2 = o + [I("buffer_load_dword v252, v255, %s, 0 offen" % srd(S_W2), "pf")]
    o = L("s_mul_i32 %s, %s, 98" % (s(sT3), s(sT2)))
    o += L("s_mul_i32 %s, %s, 25" % (s(sT1), s(sW)))
    o += L("s_add_u32 %s, %s, %s" % (s(sT3), s(sT3), s(sT1)))
    o += L("v_min_u32 v255, 24, %s" % v(vL))
    o += L("v_add_u32 v255, %s, v255" % s(sT3))
    o += L("v_lshlrev_b32 v255, 7, v255")
    g3 = o + [I("buffer_load_dword v252, v255, %s, 0 offen" % srd(S_WO), "pf")]
    return [g1 + g2 + g3]


def zero_flag_publish(is_A):
    skip = label("nzf")
    o = []
    if is_A:
        o += L("s_lshl_b32 %s, %s, 1" % (s(sT1), s(sTY)))
        o += L("s_cmp_lg_u32 %s, %s" % (s(sT1), s(sM)))
        o += L("s_cbranch_scc1 " + skip)
        off = sP0
    else:
        o += L("s_cmp_lg_u32 %s, 0" % s(sTY))
        o += L("s_cbranch_scc1 " + skip)
        off = sP1_
    o += L("s_cmp_lg_u32 %s, 0" % s(sW))
    o += L("s_cbranch_scc1 " + skip)
    o += raw(L("v_mov_b32 v138, 1") + L("buffer_store_dword v138, off, %s, %s sc1" % (srd(S_DBG), s(sZK if is_A else sZH))))
    o += L(skip + ":")
    return o


sCNTE_ = 76
sZK, sZH = 86, 87
sCNTO = 88
sH0, sH1 = 89, 90
sR2 = 91
sCT = 92
sLW2 = 93


def common_roles(P):
    P("s_lshl_b32 %s, %s, 2" % (s(sZK), s(sTY)))
    P("s_lshl_b32 %s, %s, 2" % (s(sZH), s(sM)))
    P("s_add_u32 %s, %s, 32" % (s(sZH), s(sZH)))
    if OPT.dbgst:
        P("s_add_u32 %s, %s, 128" % (s(sZK), s(sZK)))
        P("s_add_u32 %s, %s, 128" % (s(sZH), s(sZH)))
    P("s_lshl_b32 %s, %s, 8" % (s(sCNTA), s(sTY)))
    P("s_add_u32 %s, %s, %d" % (s(sCNTA), s(sCNTA), CNT_KV))
    P("s_lshl_b32 %s, %s, 8" % (s(sCNTB), s(sM)))
    P("s_add_u32 %s, %s, %d" % (s(sCNTO), s(sCNTB), CNT_O))
    P("s_add_u32 %s, %s, %d" % (s(sCNTE_), s(sCNTB), CNT_E))
    P("s_add_u32 %s, %s, %d" % (s(sCNTB), s(sCNTB), CNT_H))
    P("s_lshl_b32 %s, %s, 2" % (s(sT1), s(sM)))
    P("s_add_u32 %s, %s, %s" % (s(sT1), s(sT1), s(sW)))
    P("s_mul_i32 %s, %s, %d" % (s(sHB0), s(sT1), 112 * 1024))
    P("s_lshl_b32 %s, %s, 15" % (s(sOB), s(sT1)))
    P("s_add_u32 %s, %s, %d" % (s(sOB), s(sOB), WS_OB))


def setup_A(P):
    P("s_mul_i32 %s, %s, 112" % (s(sT1), s(sTY)))
    P("s_mul_i32 %s, %s, %d" % (s(sB4), s(sW), 32 * RS_QKV))
    P("s_add_u32 %s, %s, %s" % (s(sB4), s(sB4), s(sT1)))
    P("s_mul_i32 %s, %s, %d" % (s(sB5), s(sW), 16 * RS_QKV))
    P("s_add_u32 %s, %s, %s" % (s(sB5), s(sB5), s(sT1)))
    P("s_lshl_b32 %s, %s, 6" % (s(sT1), s(sTY)))
    P("s_add_u32 %s, %s, 3072" % (s(sT1), s(sT1)))
    P("s_mul_i32 %s, %s, %d" % (s(sB1), s(sW), 16 * RS_FF))
    P("s_lshl_b32 %s, %s, 1" % (s(sB0), s(sB1)))
    P("s_add_u32 %s, %s, %s" % (s(sB0), s(sB0), s(sT1)))
    P("s_add_u32 %s, %s, %s" % (s(sB1), s(sB1), s(sT1)))
    P("s_lshl_b32 %s, %s, 11" % (s(sT1), s(sTY)))
    P("s_add_u32 %s, %s, %s" % (s(sHB0), s(sHB0), s(sT1)))
    P("s_add_u32 %s, %s, %d" % (s(sHB0), s(sHB0), 96 * 1024 + WS_HB))
    P("s_lshl_b32 %s, %s, 14" % (s(sKV), s(sTY)))
    P("s_add_u32 %s, %s, %s" % (s(sKV), s(sKV), s(sLW32)))
    P("s_add_u32 %s, %s, %d" % (s(sKV), s(sKV), WS_KV))
    P("s_lshl_b32 %s, %s, 12" % (s(sT1), s(sTY)))
    P("s_add_u32 %s, %s, %s" % (s(sOB), s(sOB), s(sT1)))


def setup_F(P):
    P("s_mul_i32 %s, %s, 384" % (s(sP0), s(sTY)))
    P("s_mul_i32 %s, %s, %d" % (s(sT1), s(sW), 16 * RS_FF))
    P("s_add_u32 %s, %s, %s" % (s(sB2), s(sT1), s(sP0)))
    P("s_add_u32 %s, %s, 128" % (s(sB3), s(sB2)))
    P("s_add_u32 %s, %s, 256" % (s(sB5), s(sB2)))
    P("s_add_u32 %s, %s, %s" % (s(sB4), s(sB5), s(sT1)))
    P("s_lshl_b32 %s, %s, 5" % (s(sT1), s(sP0)))
    P("s_add_u32 %s, %s, %s" % (s(sHB0), s(sHB0), s(sT1)))
    if WS_HB:
        P("s_add_u32 %s, %s, %d" % (s(sHB0), s(sHB0), WS_HB))
    P("s_add_u32 %s, %s, 4096" % (s(sHB1), s(sHB0)))
    P("s_add_u32 %s, %s, 8192" % (s(sHB2), s(sHB0)))


def wphi_dma():
    o = L("s_mul_i32 %s, %s, 3136" % (s(sT2), s(sTY)))
    o += L("s_add_u32 %s, %s, %s" % (s(sT2), s(sT2), s(sLW8)))
    return o + dma(S_PHI, vL16, sT2, 0, sLW8, L_WPHI, "wphi")


QTA = [[vT + i for i in range(16)], [vT + 8 + i for i in range(8)] + [vT + 24 + i for i in range(8)]]
QLG = [ACC_A + 32, ACC_A + 48]


def q_features(accQ):
    o = []
    for j in range(2):
        o += feature_logits(accQ[j], vT + 32 + 8 * j, QLG[j], j)
    for j in range(2):
        Pr = [QLG[j] + i for i in range(16)]
        o += exp_pm(Pr, QTA[j], vT + 16)
        o += pack_pm(Pr, QTA[j])
    return o


def check_count(vreg, cnt_s, want):
    ok, lab = label("cok"), label("cspin")
    o = L("v_readfirstlane_b32 %s, %s" % (s(sT3), v(vreg)))
    o += L("s_nop 1")
    o += L("s_cmp_eq_u32 %s, %d" % (s(sT3), want))
    o += L("s_cbranch_scc1 " + ok)
    o += raw(L("""s_mov_b32 %s, %d
%s:
buffer_load_dword %s, off, %s, %s sc1
s_waitcnt vmcnt(0)
v_readfirstlane_b32 %s, %s
s_nop 1
s_cmp_eq_u32 %s, %d
s_cbranch_scc1 %s
s_sub_u32 %s, %s, 1
s_cmp_eq_u32 %s, 0
s_cbranch_scc1 %s
s_sleep 1
s_branch %s""" % (s(sSPIN), OPT.spin_max, lab, v(vreg), srd(S_WS), s(cnt_s), s(sT3), v(vreg), s(sT3), want, ok,
                  s(sSPIN), s(sSPIN), s(sSPIN), ok, lab)))
    o += L(ok + ":")
    return o


KVR = ACC_A


def kv_loads():
    return [I("buffer_load_dword %s, %s, %s, %s offen offset:%d sc1" % (v(KVR + r), v(vL4), srd(S_WS), s(sKV), r * 256), "kvl") for r in range(16)]


def kv_publish():
    o = L("s_lshl_b32 %s, %s, 11" % (s(sT1), s(sW)))
    o += L("s_add_u32 %s, %s, %d" % (s(sT1), s(sT1), L_KVF))
    o += L("v_add_u32 v237, %s, %s" % (s(sT1), v(vL16)))
    o += L("v_mov_b32 v236, 0x3f803f80")
    for k in range(8):
        o += L("v_cvt_pk_bf16_f32 %s, %s, %s" % (v(KVR + k), v(KVR + 2 * k), v(KVR + 2 * k + 1)))
    for k in range(8):
        o += L("v_cndmask_b32 %s, %s, v236, %s" % (v(KVR + k), v(KVR + k), sD29))
    for k in (6, 7):
        o += L("v_cndmask_b32 %s, %s, 0, %s" % (v(KVR + k), v(KVR + k), sHI))
    o += L("ds_write_b128 v237, %s" % v(KVR, 4))
    o += L("ds_write_b128 v237, %s offset:1024" % v(KVR + 4, 4))
    return o


def o_calc():
    P = Prog()
    P("v_add_u32 v237, %d, %s" % (L_KVF, v(vL16)))
    for n in range(8):
        P("ds_read_b128 %s, v237 offset:%d" % (a(A_KVF + 4 * n, 4), n * 1024))
    acc = [[ACC_A, ACC_A + 16], [ACC_B, ACC_B + 16]]
    for j in range(2):
        for ft, base in ((0, QTA[j][0]), (1, QLG[j])):
            for sx in range(2):
                P("v_mfma_f32_32x32x16_bf16 %s, %s, %s, %s" % (v(acc[j][ft], 16), a(A_KVF + 16 * j + 8 * ft + 4 * sx, 4), v(base + 4 * sx, 4), "0" if sx == 0 else v(acc[j][ft], 16)))
    T = vT + 16
    for j in range(2):
        t = T + 8 * j
        src_ = [acc[j][0] + 12, acc[j][0] + 13, acc[j][1] + 12, acc[j][1] + 13]
        for k in range(4):
            P("v_mov_b32 %s, %s" % (v(t + k), v(src_[k])))
            P("v_mov_b32 %s, %s" % (v(t + 4 + k), v(src_[k])))
        for k in range(4):
            P("v_permlane32_swap_b32 %s, %s" % (v(t + k), v(t + 4 + k)))
    for j in range(2):
        t = T + 8 * j
        P("v_rcp_f32 %s, %s" % (v(t + 5), v(t + 5)))
        P("v_rcp_f32 %s, %s" % (v(t + 7), v(t + 7)))
    for j in range(2):
        t = T + 8 * j
        P("v_mul_f32 %s, %s, %s" % (v(t + 4), v(t + 4), v(t + 5)))
        P("v_fma_f32 %s, %s, %s, %s" % (v(t + 4), v(t + 6), v(t + 7), v(t + 4)))
    for j in range(2):
        t = T + 8 * j
        P("v_add_f32 %s, 0x358637bd, %s" % (v(t + 4), v(t + 4)))
    for j in range(2):
        t = T + 8 * j
        P("v_rcp_f32 %s, %s" % (v(t + 4), v(t + 4)))
    for j in range(2):
        t = T + 8 * j
        P("v_mul_f32 %s, %s, %s" % (v(t + 5), v(t + 5), v(t + 4)))
        P("v_mul_f32 %s, %s, %s" % (v(t + 7), v(t + 7), v(t + 4)))
    for j in range(2):
        t = T + 8 * j
        ap, an = acc[j]
        for i in range(16):
            P("v_mul_f32 %s, %s, %s" % (v(ap + i), v(ap + i), v(t + 5)))
        for i in range(16):
            P("v_fma_f32 %s, %s, %s, %s" % (v(ap + i), v(an + i), v(t + 7), v(ap + i)))
        for k in range(8):
            P("v_cvt_pk_bf16_f32 %s, %s, %s" % (v(ap + k), v(ap + 2 * k), v(ap + 2 * k + 1)))
        for k in (6, 7):
            P("v_cndmask_b32 %s, %s, 0, %s" % (v(ap + k), v(ap + k), sHI))
        for sx in range(2):
            P("buffer_store_dwordx4 %s, %s, %s, %s offen offset:%d sc1" % (v(ap + 4 * sx, 4), v(vL16), srd(S_WS), s(sOB), (2 * j + sx) * 1024), tag="ost")
    return P.ins


P2_ACC = 16
P2_S = 80
P2_H = 96
vD2, vDX, vWA0, vWA1, vWO, vOS, vOR = 238, 239, 240, 241, 242, 243, 248
vWA0H, vWA1H = 244, 245
vEXW, vEXR, vXD, vR2 = 224, 227, 228, 15
vR2A0, vR2A1 = 246, 247
vWO1, vSXW, vSXR = 2, 3, 4
L_EX2 = 49152
sW2B, sWOB, sXB, sOB2, sR2W = 3, 59, 93, 83, 82
sW2L, sCNTE, sHL0, sHL1 = 49, 63, 84, 85


def p2_setup():
    P = Prog()
    l = v(vL)
    P("s_sub_u32 %s, %s, 1" % (s(sCT), s(sGI)))
    P("s_max_i32 %s, %s, 0" % (s(sCT), s(sCT)))
    P("s_lshl_b32 %s, %s, 7" % (s(sCT), s(sCT)))
    P("s_lshl_b32 %s, %s, 7" % (s(sR2), s(sM)))
    P("s_lshl_b32 %s, %s, 6" % (s(sT1), s(sGH)))
    P("s_add_u32 %s, %s, %s" % (s(sR2), s(sR2), s(sT1)))
    P("v_lshrrev_b32 v220, 3, %s" % l)
    P("v_and_b32 v221, 7, %s" % l)
    P("v_mul_u32_u24 v222, %d, v220" % RS_W2)
    P("v_bfe_u32 v223, v220, 1, 1")
    P("v_lshlrev_b32 v223, 2, v223")
    P("v_xor_b32 v223, v223, v221")
    P("v_lshl_add_u32 %s, v223, 4, v222" % v(vD2))
    P("v_xor_b32 v223, v220, v221")
    P("v_lshl_add_u32 %s, v223, 4, v222" % v(vDX))
    P("v_lshl_add_u32 %s, v221, 4, v222" % v(vOS))
    P("v_lshlrev_b32 v234, 7, v220")
    P("v_lshl_add_u32 v234, v223, 4, v234")
    P("s_add_u32 %s, %s, %d" % (s(sT1), s(sLW16), L_OUTST))
    P("v_add_u32 %s, %s, v234" % (v(vOR), s(sT1)))
    P("s_mul_i32 %s, %s, %d" % (s(sW2B), s(sW), 24 * 16 * RS_W2))
    P("s_add_u32 %s, %s, %s" % (s(sW2B), s(sW2B), s(sCT)))
    P("s_mul_i32 %s, %s, %d" % (s(sW2L), s(sW), 4 * 16 * RS_W2))
    P("s_add_u32 %s, %s, %s" % (s(sW2L), s(sW2L), s(sCT)))
    P("s_mul_i32 %s, %s, %d" % (s(sWOB), s(sW), 8 * RS_W2))
    P("s_add_u32 %s, %s, %s" % (s(sWOB), s(sWOB), s(sCT)))
    P("s_lshl_b32 %s, %s, 4" % (s(sT1), s(sW)))
    P("s_add_u32 %s, %s, %s" % (s(sT1), s(sT1), s(sR2)))
    P("s_mul_i32 %s, %s, %d" % (s(sXB), s(sT1), RS_X))
    P("s_add_u32 %s, %s, %s" % (s(sXB), s(sXB), s(sCT)))
    P("v_lshrrev_b32 v220, 5, %s" % l)
    P("v_bfe_u32 v221, %s, 2, 2" % l)
    P("v_lshl_or_b32 v220, v220, 2, v221")
    P("v_lshlrev_b32 v220, 7, v220")
    P("v_bfe_u32 v221, %s, 4, 1" % l)
    P("v_lshl_add_u32 v220, v221, 5, v220")
    P("v_and_b32 v221, 3, %s" % l)
    P("v_lshl_add_u32 v220, v221, 3, v220")
    P("v_bfe_u32 v221, %s, 3, 1" % l)
    P("s_and_b32 %s, %s, 1" % (s(sT1), s(sW)))
    P("v_xor_b32 v221, %s, v221" % s(sT1))
    P("v_lshl_add_u32 v222, v221, 6, v220")
    P("v_add_u32 %s, %s, v222" % (v(vWA0), s(sLW32)))
    P("s_mul_i32 %s, %s, %d" % (s(sT2), s(sT1), 8 * 28 * 128))
    P("s_add_u32 %s, %s, %d" % (s(sT2), s(sT2), L_WO))
    P("v_add_u32 %s, %s, v222" % (v(vWO), s(sT2)))
    P("v_xor_b32 v221, 1, v221")
    P("v_lshl_add_u32 v222, v221, 6, v220")
    P("v_add_u32 %s, %s, v222" % (v(vWA1), s(sLW32)))
    P("v_add_u32 %s, 0x4000, %s" % (v(vWA0H), v(vWA0)))
    P("v_add_u32 %s, 0x4000, %s" % (v(vWA1H), v(vWA1)))
    P("s_mul_i32 %s, %s, %d" % (s(sR2W), s(sW), 14336))
    P("s_add_u32 %s, %s, %d" % (s(sR2W), s(sR2W), L_R2))
    P("s_sub_u32 %s, %s, %s" % (s(sT1), s(sR2W), s(sLW32)))
    P("v_add_u32 %s, %s, %s" % (v(vR2A0), s(sT1), v(vWA0)))
    P("v_add_u32 %s, %s, %s" % (v(vR2A1), s(sT1), v(vWA1)))
    P("s_lshr_b32 %s, %s, 1" % (s(sT1), s(sW)))
    P("s_lshl_b32 %s, %s, 2" % (s(sT2), s(sM)))
    P("s_lshl_b32 %s, %s, 1" % (s(sT3), s(sGH)))
    P("s_add_u32 %s, %s, %s" % (s(sT2), s(sT2), s(sT3)))
    P("s_add_u32 %s, %s, %s" % (s(sT3), s(sT2), s(sT1)))
    P("s_mul_i32 %s, %s, %d" % (s(sH0), s(sT3), 112 * 1024))
    P("s_lshl_b32 %s, %s, 15" % (s(sOB2), s(sT3)))
    P("s_add_u32 %s, %s, %d" % (s(sOB2), s(sOB2), WS_OB))
    P("s_and_b32 %s, %s, 1" % (s(sP0), s(sW)))
    P("s_lshl_b32 %s, %s, 14" % (s(sP0), s(sP0)))
    P("s_add_u32 %s, %s, %s" % (s(sOB2), s(sOB2), s(sP0)))
    P("s_xor_b32 %s, %s, 1" % (s(sT1), s(sT1)))
    P("s_add_u32 %s, %s, %s" % (s(sT3), s(sT2), s(sT1)))
    P("s_mul_i32 %s, %s, %d" % (s(sH1), s(sT3), 112 * 1024))
    P("s_lshl_b32 %s, %s, 12" % (s(sT1), s(sW)))
    P("s_add_u32 %s, %s, %s" % (s(sHL0), s(sH0), s(sT1)))
    P("s_add_u32 %s, %s, %s" % (s(sHL1), s(sH1), s(sT1)))
    P("s_mul_i32 %s, %s, %d" % (s(sT1), s(sW), 24 * 1024))
    P("s_add_u32 %s, %s, %s" % (s(sH0), s(sH0), s(sT1)))
    P("s_add_u32 %s, %s, %s" % (s(sH1), s(sH1), s(sT1)))
    for d in range(1, 4):
        P("s_xor_b32 %s, %s, %d" % (s(sT1), s(sW), d))
        P("s_mul_i32 %s, %s, %d" % (s(sT1), s(sT1), 3 * 4096))
        P("s_add_u32 %s, %s, %d" % (s(sT1), s(sT1), L_EX + (d - 1) * 4096))
        P("v_add_u32 %s, %s, %s" % (v(vEXW + d - 1), s(sT1), v(vL16)))
    P("s_mul_i32 %s, %s, %d" % (s(sT1), s(sW), 3 * 4096))
    P("s_add_u32 %s, %s, %d" % (s(sT1), s(sT1), L_EX))
    P("v_add_u32 %s, %s, %s" % (v(vEXR), s(sT1), v(vL16)))
    P("v_and_b32 v220, 31, %s" % l)
    P("s_lshr_b32 %s, %s, 1" % (s(sT1), s(sW)))
    P("s_lshl_b32 %s, %s, 5" % (s(sT1), s(sT1)))
    P("v_add_u32 v221, %s, v220" % s(sT1))
    P("v_lshlrev_b32 v222, 7, v221")
    P("s_and_b32 %s, %s, 1" % (s(sT2), s(sW)))
    P("s_lshl_b32 %s, %s, 2" % (s(sT2), s(sT2)))
    P("v_and_b32 v223, 7, v220")
    P("v_xor_b32 v223, %s, v223" % s(sT2))
    P("v_lshl_add_u32 v222, v223, 4, v222")
    P("v_lshrrev_b32 v223, 5, %s" % l)
    P("v_lshl_add_u32 v222, v223, 3, v222")
    P("v_add_u32 v222, %d, v222" % L_OUTST)
    for rq in range(4):
        P("v_xor_b32 %s, %d, v222" % (v(vXD + rq), 16 * rq))
    P("s_lshl_b32 %s, %s, 8" % (s(sT1), s(sGH)))
    P("s_add_u32 %s, %s, %d" % (s(sT1), s(sT1), L_RSTAT))
    P("v_lshlrev_b32 v221, 2, v221")
    P("v_add_u32 %s, %s, v221" % (v(vR2), s(sT1)))
    P("s_mov_b32 s80, 0x20000000")
    P("s_mov_b32 s81, 0x20000000")
    return P.ins


def p2_r2():
    return L("ds_read_b32 %s, %s" % (v(vR2), v(vR2))) + L("v_mul_f32 %s, %s, %s" % (v(vR2), v(vR2), v(vR2)))


def wo_dma():
    o = [dma(S_WO, vD2, sWOB, 32 * u * RS_W2, sLW8, L_WO + 4096 * u, "wo") for u in range(14)]
    g = L("s_add_u32 %s, %s, %d" % (s(sT1), s(sCT), 448 * RS_W2))
    o.append(g + dma(S_WO, vD2, sT1, 0, None, L_WO + 57344, "wo"))
    return o


def xt_dma():
    return [dma(S_X, vDX, sXB, 8 * i * RS_X, sLW16, L_XT + 1024 * i, "xt") for i in range(2)]


class W2Stage:
    U_STEPS = {0: (7, 8), 1: (9, 10), 2: (11, 12), 3: (13, 14), 4: (15, 16), 5: (24, 25), 6: (26, 27)}

    def __init__(self, n_p1):
        self.n = n_p1

    def slot(self, u):
        return SLOT * ((self.n + u) % NSLOT)

    def dma(self, u):
        o = []
        for h, jj in enumerate(self.U_STEPS[u]):
            for i in range(2):
                o.append(w2_step_dma(jj, i, sLW32, self.slot(u) + h * 2048 + 1024 * i, "w2_%d" % u))
        return o

    def reads(self, u):
        o = []
        for h, jj in enumerate(self.U_STEPS[u]):
            for c, (lo, hi) in enumerate(((vWA0, vWA0H), (vWA1, vWA1H))):
                for q in range(2):
                    off = self.slot(u) + h * 2048 + 1024 * q
                    reg = lo
                    if off > 65535 - 1024:
                        reg, off = hi, off - 16384
                    o.append(I("ds_read_b64_tr_b16 %s, %s offset:%d" % (a(W2F(jj) + 4 * c + 2 * q, 2), v(reg), off), "w2r_%d" % u))
        return o

    def r2_dma(self, fill):
        o = []
        for st in range(7):
            jj = st if fill == 0 else 17 + st
            for i in range(2):
                o.append(w2_step_dma(jj, i, sR2W, st * 2048 + 1024 * i, "r2_%d" % fill))
        return o

    def r2_reads(self, fill):
        o = []
        for st in range(7):
            jj = st if fill == 0 else 17 + st
            for c, reg in enumerate((vR2A0, vR2A1)):
                for q in range(2):
                    o.append(I("ds_read_b64_tr_b16 %s, %s offset:%d" % (a(W2F(jj) + 4 * c + 2 * q, 2), v(reg), st * 2048 + 1024 * q), "r2r_%d" % fill))
        return o

    def early_reads(self):
        o = [L("@waitvm r2_0 w2_0 w2_1 w2_2")]
        o += G(self.r2_reads(0)) + G(self.reads(0)) + G(self.reads(1)) + G(self.reads(2))
        return o

    def refill_a(self):
        return [L("@waitlgkm r2r_0")] + self.r2_dma(1)

    def refill_b(self):
        return [L("@waitlgkm w2r_0 w2r_1")] + self.dma(5) + self.dma(6)

    def late_reads(self):
        o = L("@waitvm w2_3 w2_4") + self.reads(3) + self.reads(4)
        o += L("@waitvm r2_1") + self.r2_reads(1)
        o += L("@waitvm w2_5 w2_6") + self.reads(5) + self.reads(6)
        return o


def W2F(jj):
    return 8 * jj


def step_ft(jj):
    if jj < 16:
        return False, 12 * (jj >> 3) + (jj & 7)
    if jj < 24:
        return False, 12 * ((jj - 16) >> 2) + 8 + ((jj - 16) & 3)
    return True, 96 + (jj - 24)


def w2_step_dma(jj, i, ldsbase, ldsoff, tag):
    late, ft = step_ft(jj)
    return dma(S_W2, vD2, sW2L if late else sW2B, (16 * ft + 8 * i) * RS_W2, ldsbase, ldsoff, tag)


def ln_vm(chs, extra0, extra3):
    d = [chunk_dma(c) for c in chs]
    return [extra0 + d[0], d[1] + d[2], d[3] + d[4] + [code_prefetch()], extra3]


def open_program(P, setups):
    Q = Prog()
    common_setup(Q)
    for f in setups:
        f(Q)
    P.ext(flat(merge(x_loads(), G(Q.ins))))
    stamp(P, 11)


W2_RING = 2


def program_A(P):
    RING_OFF[0] = 1
    gK = Group("k", [0, 1], [ACC_A, ACC_A + 16], vTA)
    gV = Group("v", [0, 1], [ACC_A + 32, ACC_A + 48], vTA)
    gQ = Group("q", [0, 1], [ACC_A, ACC_A + 16], vTA)
    gH = Group("hA", [0, 1], [ACC_B, ACC_B + 16], vTA + 8)
    groups = [gK, gV, gQ, gH]
    open_program(P, [common_roles, setup_A, ln_addr_setup, lambda Q: tile_addr_setup(Q, "att", vTA),
                     lambda Q: tile_addr_setup(Q, "h", vTA + 8), lambda Q: Q.ext(wphi_addr()),
                     lambda Q: Q.ext(exch_addr_setup()), lambda Q: Q.ext(p2_setup())])
    stamp(P, 0)
    chs = group_chunks(groups)
    layernorm(P, ln_vm(chs, [zero_init(True), wphi_dma()], [warmup()]))
    stamp(P, 1)
    w2 = W2Stage(len(chs) + RING_OFF[0])
    assert w2.n % NSLOT == W2_RING
    f_k = G(k_epilogue([ACC_A, ACC_A + 16], [ACC_B, ACC_B + 16]))
    flagload = [L("buffer_load_dword %s, off, %s, %s sc1" % (v(vFZ1), srd(S_DBG), s(sZK))),
                L("buffer_load_dword %s, off, %s, %s sc1" % (v(vFZ0), srd(S_DBG), s(sZH)))]
    f_v = G(v_epilogue([ACC_A + 32, ACC_A + 48]))
    f_kv = G(kv_tile(ACC_A + 32)) + [check_flag(vFZ1, sZK)] + G(kv_atomics(ACC_A + 32))
    f_q = G(q_features([ACC_A, ACC_A + 16]))
    cV, cQ, cH = 4, 8, 12
    fillers = [(0, 0, 24, G(ln_stage_b())),
               (0, 24, 56, G(wphi_frags()) + G(p2_r2())),
               (1, 1, 56, f_k + flagload),
               (2, 1, 26, f_v),
               (2, 29, 54, f_kv),
               (2, 26, 28, l2_prefetch_w2()),
               (3, 14, 56, w2.r2_dma(0) + xt_dma()),
               (3, 1, 56, f_q)]
    bar_pre = {cQ + 2: L("@waitlgkm phiw"), cH + 2: L("@waitvm kvat")}
    bar_post = {0: zero_flag_publish(True), cH + 2: signal(sCNTA)}
    chunks, pre, body = build_p1_stream(groups, fillers, bar_pre, bar_post, tail=[w2.dma(u) for u in range(3)])
    P("@waitvm wphi")
    P.ext(pre)
    P.ext(body)
    stamp(P, 2)
    P("s_barrier")
    e0 = G(ffn_epilogue(ACC_B, vT + 24, sHB0, 0))
    e1 = G(ffn_epilogue(ACC_B + 16, vT + 16, sHB0, 1024))
    P.ext(flat(merge(e0, e1)))
    P("buffer_load_dword %s, off, %s, %s sc1" % (v(vFZ1), srd(S_WS), s(sCNTA)))
    P.ext(flat(merge(w2.early_reads(), w2.dma(3) + w2.dma(4))))
    P.ext(check_count(vFZ1, sCNTA, 16))
    P.ext(kv_loads())
    P("buffer_load_dword %s, off, %s, %s sc1" % (v(vFE), srd(S_WS), s(sCNTE_)))
    P.ext(kv_publish())
    P("@waitvm hst")
    P("@waitlgkm_all")
    P("s_barrier")
    P.ext(check_flag(vFZ0, sZH))
    P.ext(signal(sCNTB))
    stamp(P, 3)
    P.ext(o_calc())
    go = label("go")
    P("s_cmp_lg_u32 %s, 0" % s(sGI))
    P("s_cbranch_scc1 " + go)
    P.ext(raw(L("s_waitcnt vmcnt(0)") + L("s_barrier")) + signal(sCNTO))
    if OPT.stamps:
        keep = PEND[0]
        Pq = Prog(); stamp(Pq, 9, final=True); P.ext(raw([x for x in Pq.ins if x.kind != "pseudo"])); PEND[0] = keep
    P("s_branch L_exit")
    P(go + ":")
    P.ext(check_count(vFE, sCNTE_, 8))
    stamp(P, 4)
    P("s_branch L_phase2")


def program_F(P):
    RING_OFF[0] = 0
    gU0 = Group("ffA", [0, 1, 2, 3], [ACC_A + 16 * t for t in range(4)], vTA)
    gU1 = Group("ffB", [0, 1, 2, 3], [ACC_B + 16 * t for t in range(4)], vTA)
    gHa = Group("hF0", [0, 1], [ACC_A, ACC_A + 16], vTA + 8)
    gHb = Group("hF1", [0, 1], [ACC_A + 32, ACC_A + 48], vTA + 8)
    groups = [gU0, gU1, gHa, gHb]
    open_program(P, [common_roles, setup_F, ln_addr_setup, lambda Q: tile_addr_setup(Q, "ff", vTA),
                     lambda Q: tile_addr_setup(Q, "h", vTA + 8), lambda Q: Q.ext(p2_setup())])
    stamp(P, 0)
    chs = group_chunks(groups)
    layernorm(P, ln_vm(chs, [zero_init(False)], [warmup()]))
    stamp(P, 1)
    w2 = W2Stage(len(chs) + RING_OFF[0])
    assert w2.n % NSLOT == W2_RING
    f0, f1, fa = [], [], []
    for t in range(4):
        f0 += G(ffn_epilogue(ACC_A + 16 * t, vT + 24, sHB0, t * 1024))
        f1 += G(ffn_epilogue(ACC_B + 16 * t, vT + 24, sHB1, t * 1024, "hst_e"))
    for t in range(2):
        fa += G(ffn_epilogue(ACC_A + 16 * t, vT + 24, sHB2, t * 1024))
    flagload = [L("buffer_load_dword %s, off, %s, %s sc1" % (v(vFZ0), srd(S_DBG), s(sZH)))]
    cHa, cHb = 14, 18
    fillers = [(0, 0, 44, G(ln_stage_b())),
               (0, 62, 112, G(p2_r2()) + w2.r2_dma(0) + xt_dma()),
               (1, 2, 110, f0 + flagload),
               (1, 100, 104, l2_prefetch_w2()),
               (2, 1, 56, f1),
               (3, 2, 54, fa)]
    bar_pre = {cHb + 3: L("@waitvm hst_e")}
    bar_post = {0: zero_flag_publish(False), cHb + 3: check_flag(vFZ0, sZH) + signal(sCNTE_)}
    chunks, pre, body = build_p1_stream(groups, fillers, bar_pre, bar_post, tail=[w2.dma(u) for u in range(3)])
    P.ext(pre)
    P.ext(body)
    stamp(P, 2)
    P("s_barrier")
    e0 = G(ffn_epilogue(ACC_A + 32, vT + 24, sHB2, 2048))
    e1 = G(ffn_epilogue(ACC_A + 48, vT + 32, sHB2, 3072))
    P.ext(flat(merge(e0, e1)))
    P.ext(flat(merge(w2.early_reads(), w2.dma(3) + w2.dma(4))))
    P("buffer_load_dword %s, off, %s, %s sc1" % (v(vFE), srd(S_WS), s(sCNTE_)))
    P("@waitvm hst")
    P("s_barrier")
    P.ext(signal(sCNTB))
    stamp(P, 3)
    P.ext(check_count(vFE, sCNTE_, 8))
    stamp(P, 4)


def phase2(P):
    P("L_phase2:")
    P("@flush")
    P("s_waitcnt lgkmcnt(0)")
    w2 = W2Stage(W2_RING)
    P("v_xor_b32 %s, 64, %s" % (v(vWO1), v(vWO)))
    P("s_xor_b32 %s, %s, 1" % (s(sT1), s(sW)))
    P("s_lshl_b32 %s, %s, 12" % (s(sT1), s(sT1)))
    P("s_add_u32 %s, %s, %d" % (s(sT1), s(sT1), L_EX2))
    P("v_add_u32 %s, %s, %s" % (v(vSXW), s(sT1), v(vL16)))
    P("s_add_u32 %s, %s, %d" % (s(sT1), s(sLW32), L_EX2))
    P("v_add_u32 %s, %s, %s" % (v(vSXR), s(sT1), v(vL16)))
    stamp(P, 6)
    items = [(jj, aa) for jj in range(28) for aa in range(2)]
    NB = 32
    nI = len(items)

    def hload(n):
        jj, aa = items[n]
        late, ft = step_ft(jj)
        sb = (sHL0 if aa == 0 else sHL1) if late else (sH0 if aa == 0 else sH1)
        o = L("s_add_u32 %s, %s, %d" % (s(sSOFF), s(sb), ft * 1024))
        o += [I("buffer_load_dwordx4 %s, %s, %s, %s offen sc1" % (v(P2_H + 4 * (n % NB), 4), v(vL16), srd(S_WS), s(sSOFF)), "h")]
        return o

    def oload(kk):
        o = []
        if kk % 4 == 0 and kk > 0:
            o += L("s_add_u32 %s, %s, 4096" % (s(sOB2), s(sOB2)))
        n = nI + kk
        o += [I("buffer_load_dwordx4 %s, %s, %s, %s offen offset:%d sc1" % (v(P2_H + 4 * (n % NB), 4), v(vL16), srd(S_WS), s(sOB2), (kk % 4) * 1024), "o")]
        return o
    for n in range(NB):
        P.ext(hload(n))
    P.ext(flat(w2.r2_dma(1) + w2.dma(5) + w2.dma(6)))
    P("buffer_load_dword %s, off, %s, %s sc1" % (v(vFZ0), srd(S_WS), s(sCNTB)))
    pend = []
    for n, (jj, aa) in enumerate(items):
        for c in range(2):
            acc = P2_ACC + 16 * (2 * aa + c)
            P("v_mfma_f32_32x32x16_bf16 %s, %s, %s, %s" % (v(acc, 16), a(W2F(jj) + 4 * c, 4), v(P2_H + 4 * (n % NB), 4), "0" if jj == 0 else v(acc, 16)))
            if pend and n >= 23:
                P.ext(pend.pop(0))
        if n == 0:
            P.ext(w2.reads(3) + w2.reads(4))
        if n == 1:
            na = label("notA")
            P("s_cmp_ge_u32 %s, 4" % s(sGI))
            P("s_cbranch_scc1 " + na)
            P.ext(raw(L("s_barrier")) + signal(sCNTO))
            P(na + ":")
        if n == 22:
            P.ext(check_count(vFZ0, sCNTB, 16))
            pend += [hload(m) for m in range(NB, NB + 23)]
            P("buffer_load_dword %s, off, %s, %s sc1" % (v(vFZ1), srd(S_WS), s(sCNTO)))
        elif n == 23:
            pend.append(hload(NB + 23))
        elif 24 <= n < 40:
            kk = n - 24
            pend.append((check_count(vFZ1, sCNTO, 8) if kk == 0 else []) + oload(kk))
        if n == 31:
            P("@waitvm r2_1")
            P.ext(w2.r2_reads(1))
            P("@waitvm w2_5 w2_6")
            P.ext(w2.reads(5) + w2.reads(6))
        if n == 34:
            P("@waitlgkm r2r_1")
            P("s_barrier")
            pend = wo_dma() + pend
    P.ext(flat(pend))
    stamp(P, 7)
    P("@waitvm wo")
    P("s_barrier")
    for d in range(1, 4):
        acc = P2_ACC + 16 * d
        for q in range(4):
            P("ds_write_b128 %s, %s offset:%d" % (v(vEXW + d - 1), v(acc + 4 * q, 4), q * 1024))

    SA = [P2_S, P2_H + 32]
    sl = [(kk, c) for kk in range(16) for c in range(2)]

    def wo_reads(m):
        kk, c = sl[m]
        h, sx = kk // 2, kk % 2
        buf = 4 * (m % 8)
        return [I("ds_read_b64_tr_b16 %s, %s offset:%d" % (a(buf + 2 * q, 2), v(vWO1 if c else vWO), (28 * h + 16 * sx + 8 * q) * 128)) for q in range(2)]

    def smfma(m):
        kk, c = sl[m]
        n = nI + kk
        return L("v_mfma_f32_32x32x16_bf16 %s, %s, %s, %s" % (v(SA[c], 16), a(4 * (m % 8), 4), v(P2_H + 4 * (n % NB), 4), "0" if kk == 0 else v(SA[c], 16)))
    for m in range(4):
        P.ext(wo_reads(m))
    adds = []
    for d in range(1, 4):
        for i in range(16):
            adds.append(I("v_add_f32 %s, %s, %s" % (v(P2_ACC + i), v(P2_ACC + i), v(P2_ACC + 16 * d + i))))
    for m in range(32):
        P.ext(smfma(m))
        if m + 4 < 32:
            P.ext(wo_reads(m + 4))
        if m == 3:
            P("@waitlgkm_all")
            P("s_barrier")
            for d in range(1, 4):
                acc = P2_ACC + 16 * d
                for q in range(4):
                    P("ds_read_b128 %s, %s offset:%d" % (v(acc + 4 * q, 4), v(vEXR), (d - 1) * 4096 + q * 1024))
        if m >= 8:
            P.ext(adds[:2])
            adds = adds[2:]
    P.ext(adds)
    B, S_, T = P2_ACC, P2_S, P2_H + 64
    X = P2_H + 48
    for q in range(4):
        P("ds_write_b128 %s, %s offset:%d" % (v(vSXW), v(SA[1] + 4 * q, 4), q * 1024))
    for rq in range(4):
        P("ds_read_b64 %s, %s offset:%d" % (v(X + 2 * rq, 2), v(vXD + rq), L_XT - L_OUTST))
    for i in range(16):
        P("v_mul_f32 %s, %s, %s" % (v(B + i), v(B + i), v(vR2)))
    P("@waitlgkm_all")
    P("s_barrier")
    for q in range(4):
        P("ds_read_b128 %s, %s offset:%d" % (v(SA[1] + 4 * q, 4), v(vSXR), q * 1024))
    for i in range(16):
        P("v_mul_f32 %s, 0x%x, %s" % (v(T + i), NLOG2E, v(B + i)))
    for i in range(16):
        P("v_exp_f32 %s, %s" % (v(T + i), v(T + i)))
    for i in range(16):
        P("v_add_f32 %s, %s, %s" % (v(S_ + i), v(S_ + i), v(SA[1] + i)))
    stamp(P, 8)
    for i in range(16):
        P("v_add_f32 %s, 1.0, %s" % (v(T + i), v(T + i)))
    for i in range(16):
        P("v_mul_f32 %s, %s, %s" % (v(B + i), v(B + i), v(S_ + i)))
    for i in range(16):
        P("v_rcp_f32 %s, %s" % (v(T + i), v(T + i)))
    U = T + 16
    for k in range(8):
        P("v_lshlrev_b32 %s, 16, %s" % (v(U + 2 * k), v(X + k)))
        P("v_and_b32 %s, 0xffff0000, %s" % (v(U + 2 * k + 1), v(X + k)))
    for i in range(16):
        P("v_fma_f32 %s, %s, %s, %s" % (v(B + i), v(B + i), v(T + i), v(U + i)))
    for k in range(8):
        P("v_cvt_pk_bf16_f32 %s, %s, %s" % (v(B + k), v(B + 2 * k), v(B + 2 * k + 1)))
    for rq in range(4):
        P("ds_write_b64 %s, %s" % (v(vXD + rq), v(B + 2 * rq, 2)))
    P("@waitlgkm_all")
    P("s_barrier")
    for i in range(2):
        P("ds_read_b128 %s, %s offset:%d" % (v(T + 4 * i, 4), v(vOR), 1024 * i))
    for i in range(2):
        if i:
            P("s_add_u32 %s, %s, %d" % (s(sXB), s(sXB), 8 * RS_X))
        P("buffer_store_dwordx4 %s, %s, %s, %s offen" % (v(T + 4 * i, 4), v(vOS), srd(S_OUT), s(sXB)))
    stamp(P, 9, final=True)


def finish(P):
    ins = resolve_waits(P.ins)
    ins, nn = pad_hazards(ins)
    return ins, nn


def build():
    uid[0] = 0
    head = Prog()
    prologue(head)
    head("s_cmp_ge_u32 %s, 4" % s(sGI))
    head("s_cbranch_scc1 L_typeF")
    pend = PEND[0]
    PA = Prog(); PA.ext(head.ins); program_A(PA)
    PEND[0] = pend
    PF = Prog(); PF.ext(head.ins); program_F(PF)
    PEND[0] = 4
    insA, nA = finish(PA)
    insF, nF = finish(PF)
    def cut(ins):
        for k, x in enumerate(ins):
            if x.text == "s_cbranch_scc1 L_typeF":
                return k + 1
    ka, kf = cut(insA), cut(insF)
    assert [x.text for x in insA[:ka]] == [x.text for x in insF[:kf]]
    P2 = Prog()
    if OPT.stop_after == "p1":
        P2("L_phase2:")
        P2("s_waitcnt vmcnt(0) lgkmcnt(0)")
        stamp(P2, 9, final=True)
    else:
        phase2(P2)
    ins2, n2 = finish(P2)
    text = render(insA) + "\nL_typeF:\n" + render(insF[kf:]) + "\n" + render(ins2) + "\nL_exit:\n    s_endpgm\n"
    stats = dict(nA=len(insA), nF=len(insF), n2=len(ins2), nopA=nA, nopF=nF, nop2=n2)
    return text, stats


HEADER = """; Kernarg layout for this problem (88 bytes, ptrs only, base s[0:1]):
; One persistent launch, 256 workgroups (one per CU): phase 1 = LayerNorm + q/k/v + gate/up GEMMs with the
; @launch grid=(256,1,1) block=(256,1,1) lds=%d
.amdgcn_target "amdgcn-amd-amdhsa--gfx950"
.text
.globl %s
.p2align 8
.type %s,@function
%s:
"""
FOOTER = """
.section .rodata,"a"
.p2align 6
.amdhsa_kernel %s
  .amdhsa_next_free_vgpr 512
  .amdhsa_next_free_sgpr 102
  .amdhsa_accum_offset 256
  .amdhsa_group_segment_fixed_size 0
  .amdhsa_kernarg_size 88
  .amdhsa_user_sgpr_count 2
  .amdhsa_user_sgpr_kernarg_segment_ptr 1
  .amdhsa_system_sgpr_workgroup_id_x 1
.end_amdhsa_kernel
"""


def generate(path):
    text, stats = build()
    out = HEADER % (LDS_SIZE, NAME, NAME, NAME) + text + FOOTER % NAME
    open(path, "w").write(out)
    return stats


if __name__ == "__main__":
    import argparse
    ap = argparse.ArgumentParser()
    ap.add_argument("-o", default="out.s")
    ap.add_argument("--stamps", action="store_true")
    ap.add_argument("--stop", default=None)
    ap.add_argument("--hot", action="store_true")
    ap.add_argument("--exp", default="")
    ap.add_argument("--dbgst", type=int, default=0)
    a_ = ap.parse_args()
    OPT.stamps = a_.stamps
    OPT.stop_after = a_.stop
    OPT.hot_w = a_.hot
    OPT.dbgst = a_.dbgst
    if "nol2pf" in a_.exp:
        OPT.l2pf = False
    for e in a_.exp.split(","):
        if e:
            setattr(OPT, e, True)
    print(generate(a_.o))
```
